```python
import torch

def _softmax(x, axis=-1):
    return torch.softmax(x, dim=axis)
def _gelu(x):
    return torch.nn.functional.gelu(x, approximate="tanh")
def _silu(x):
    return torch.nn.functional.silu(x)
def _sigmoid(x):
    return torch.sigmoid(x)
def _layernorm(x, axis=-1, eps=1e-5):
    m = x.mean(dim=axis, keepdim=True)
    v = x.var(dim=axis, keepdim=True, unbiased=False)
    return (x - m) / torch.sqrt(v + eps)
def _scatter_add(tgt, idx, src, axis=0):
    return tgt.clone().index_add_(axis, idx, src)
def _segment_sum(src, seg, n):
    out = torch.zeros((n,) + src.shape[1:], dtype=src.dtype)
    return out.index_add_(0, seg, src)
def _pad(x, pw):
    flat = tuple(v for pair in reversed(pw) for v in pair)
    return torch.nn.functional.pad(x, flat)

kernel_name = 'parallel_sum__grouped_kv_mqa__dense_activation_squared_relu__prompt'

def setup_inputs():

    _w = (lambda a: (lambda t: t.to(torch.bfloat16) if t.is_floating_point() else t)(torch.as_tensor(a)))
    def _A_setup():
        B, S, D, H = 1, 2048, 640, 32
        Dh = D // H
        return {
            "x": _w((lambda *s: torch.randn(*s, dtype=torch.bfloat16) * 0.05)(B, S, D)),
            "wq": _w((lambda *s: torch.randn(*s, dtype=torch.bfloat16) * 0.2)(D, H * Dh)),
            "wk": _w((lambda *s: torch.randn(*s, dtype=torch.bfloat16) * 0.2)(D, Dh)),
            "wv": _w((lambda *s: torch.randn(*s, dtype=torch.bfloat16) * 0.1)(D, Dh)),
            "wo": _w((lambda *s: torch.randn(*s, dtype=torch.bfloat16) * 0.1)(H * Dh, D)),
        }
    _A_in = _A_setup()

    def _B_setup():
        B, S, D, F = 1, 2048, 640, 1536
        return {
            "x": _w((lambda *s: torch.randn(*s, dtype=torch.bfloat16) * 0.05)(B, S, D)),
            "w1": _w((lambda *s: torch.randn(*s, dtype=torch.bfloat16) * 0.1)(D, F)),
            "b1": _w((lambda *s: torch.randn(*s, dtype=torch.bfloat16) * 0.4)(F)),
            "w2": _w((lambda *s: torch.randn(*s, dtype=torch.bfloat16) * 0.1)(F, D)),
            "b2": _w((lambda *s: torch.randn(*s, dtype=torch.bfloat16) * 12.8)(D)),
        }
    _B_in = _B_setup()

    return {
        "A_x": _A_in["x"],
        "A_wq": _A_in["wq"],
        "A_wk": _A_in["wk"],
        "A_wv": _A_in["wv"],
        "A_wo": _A_in["wo"],
        "B_x": _B_in["x"],
        "B_w1": _B_in["w1"],
        "B_b1": _B_in["b1"],
        "B_w2": _B_in["w2"],
        "B_b2": _B_in["b2"],
    }

def reference(A_x, A_wq, A_wk, A_wv, A_wo, B_x, B_w1, B_b1, B_w2, B_b2):
    def _A_ref(x, wq, wk, wv, wo):
        B, S, D = x.shape
        H = 32
        Dh = D // H
        q = (lambda x, *d: x.permute(*d))((x @ wq).reshape(B, S, H, Dh), 0, 2, 1, 3)
        k = x @ wk
        v = x @ wv
        scores = torch.einsum("bhqd,bkd->bhqk", q, k) * (Dh ** -0.5)
        p = _softmax(scores, axis=-1)
        o = torch.einsum("bhqk,bkd->bhqd", p, v)
        return (lambda x, *d: x.permute(*d))(o, 0, 2, 1, 3).reshape(B, S, H * Dh) @ wo

    def _B_ref(x, w1, b1, w2, b2):
        h = torch.einsum("bsd,df->bsf", x, w1) + b1
        zero = torch.zeros_like(h)
        r = torch.where(h > zero, h, zero)
        h = r * r
        out = torch.einsum("bsf,fd->bsd", h, w2) + b2
        return out

    x = A_x
    xn = _layernorm(x, axis=-1)
    return x + _A_ref(xn, A_wq, A_wk, A_wv, A_wo) + _B_ref(xn, B_w1, B_b1, B_w2, B_b2)
```

```python
class Asm:
    def __init__(self):
        self.lines = []
        self.uid = 0
    def __call__(self, s):
        for ln in s.strip("\n").split("\n"):
            self.lines.append("    " + ln.strip() if ln.strip() and not ln.strip().endswith(":") else ln.strip())
    def c(self, s):
        self.lines.append("    ; " + s)
    def label(self, name):
        self.lines.append(name + ":")
    def newlabel(self, base):
        self.uid += 1
        return f"L_{base}_{self.uid}"
    def text(self):
        return "\n".join(self.lines) + "\n"

def vr(a, n=1):
    return f"v{a}" if n == 1 else f"v[{a}:{a+n-1}]"
def sr(a, n=1):
    return f"s{a}" if n == 1 else f"s[{a}:{a+n-1}]"

def srd(A, d, lo, hi, nbytes):
    A(f"s_mov_b32 s{d}, s{lo}")
    A(f"s_mov_b32 s{d+1}, s{hi}")
    A(f"s_mov_b32 s{d+2}, {nbytes}")
    A(f"s_mov_b32 s{d+3}, 0x00020000")

def kd(name, vgpr, sgpr=102, accum=None):
    accum = accum or ((vgpr + 3) // 4 * 4)
    return f""".amdhsa_kernel {name}
  .amdhsa_next_free_vgpr {vgpr}
  .amdhsa_next_free_sgpr {sgpr}
  .amdhsa_accum_offset {accum}
  .amdhsa_group_segment_fixed_size 0
  .amdhsa_kernarg_size 104
  .amdhsa_user_sgpr_count 2
  .amdhsa_user_sgpr_kernarg_segment_ptr 1
  .amdhsa_system_sgpr_workgroup_id_x 1
.end_amdhsa_kernel
"""
```

```python
from asmlib import *

WS_Q = 0
WS_K = 2621440
WS_V = WS_K + 81920
WS_H = WS_V + 81920
WS_W2T = WS_H + 6291456
WS_O = WS_W2T + 2785280
WS_END = WS_O + 2621440
WS_SIZE = WS_END

QSCALE = (20 ** -0.5) * 1.4426950408889634

def magic(d, maxp):
    for sh in range(8, 24):
        m = (1 << sh) // d + 1
        if m * maxp < (1 << 32) and m < (1 << 24) and all((p * m) >> sh == p // d for p in range(maxp + 1)):
            return m, sh
    raise Exception("no magic")

def f2u(x):
    import struct
    return struct.unpack("<I", struct.pack("<f", x))[0]

XN = 0
STG0 = 81920
STG = 20480
R_W1 = 0
R_WQ = 12288
R_KV = 18432

def gen_k1(name):
    A = Asm()
    A.label(name)
    A("s_cmp_ge_u32 s2, 256")
    A(f"s_cbranch_scc1 L_{name}_end")
    A("s_load_dwordx4 s[44:47], s[0:1], 0")
    A("s_load_dwordx4 s[48:51], s[0:1], 16")
    A("s_load_dwordx2 s[52:53], s[0:1], 32")
    A("s_load_dwordx4 s[56:59], s[0:1], 48")
    A("s_load_dwordx2 s[60:61], s[0:1], 64")
    A("s_load_dwordx2 s[62:63], s[0:1], 96")
    A("s_and_b32 s39, s2, 7")
    A("s_lshr_b32 s40, s2, 3")
    A("s_lshl_b32 s36, s39, 2")
    A("s_lshr_b32 s41, s40, 3")
    A("s_add_u32 s36, s36, s41")
    A("s_and_b32 s37, s40, 7")
    A("v_lshrrev_b32 v2, 6, v0")
    A("v_and_b32 v1, 63, v0")
    A("v_readfirstlane_b32 s38, v2")
    A("v_lshrrev_b32 v3, 4, v1")
    A("v_and_b32 v4, 15, v1")
    A("s_lshl_b32 s39, s38, 3")
    A("v_add_u32 v5, s39, v3")
    A("v_mul_u32_u24 v6, 1280, v5")
    A("v_lshl_add_u32 v6, v4, 4, v6")
    A("s_waitcnt lgkmcnt(0)")
    srd(A, 8, 44, 45, 2621440)
    srd(A, 24, 62, 63, WS_SIZE)
    A("s_lshl_b32 s39, s38, 8")
    A("s_add_u32 s39, s39, s2")
    A("s_cmp_lt_u32 s39, 544")
    A("s_cselect_b32 s64, 1, 0")
    A("s_lshr_b32 s65, s39, 3")
    A("s_and_b32 s66, s39, 7")
    A("s_cmp_lt_u32 s65, 20")
    A("s_cselect_b32 s28, s52, s60")
    A("s_cselect_b32 s29, s53, s61")
    A("s_mov_b32 s73, 819200")
    A("s_cselect_b32 s30, s73, 1966080")
    A("s_mov_b32 s31, 0x00020000")
    A("s_cselect_b32 s67, 0, 20")
    A("s_cselect_b32 s70, 1, 0")
    A("s_sub_u32 s67, s65, s67")
    A("s_mul_i32 s67, s67, 40960")
    A("s_mul_i32 s68, s66, 160")
    A("s_add_u32 s67, s67, s68")
    lT = f"L_{name}_noT"
    A("s_cmp_eq_u32 s64, 0")
    A(f"s_cbranch_scc1 {lT}")
    m10, s10 = magic(10, 320)
    TSCR = STG0 + 3 * STG
    A(f"s_mul_i32 s69, s38, 5120")
    A(f"s_add_u32 s69, s69, {TSCR}")
    for i in range(5):
        A(f"v_add_u32 v7, {64*i}, v1")
        A(f"v_mul_u32_u24 v8, {m10}, v7")
        A(f"v_lshrrev_b32 v8, {s10}, v8")
        A(f"v_mul_u32_u24 v9, 10, v8")
        A(f"v_sub_u32 v9, v7, v9")
        A(f"v_mul_u32_u24 v8, 1280, v8")
        A(f"v_lshl_add_u32 v8, v9, 4, v8")
        A(f"s_add_u32 m0, s69, {1024*i}")
        A("s_nop 0")
        A(f"buffer_load_dwordx4 v8, s[28:31], s67 offen lds")
    A.label(lT)
    XR = 80
    A("s_mul_i32 s39, s36, 81920")
    A("s_add_u32 s40, s39, 5120")
    for p in range(2):
        for i in range(5):
            A(f"buffer_load_dwordx4 {vr(XR + 20*p + 4*i, 4)}, v6, s[8:11], s{39+p} offen offset:{256*i}")
    srd(A, 12, 46, 47, 819200)
    srd(A, 16, 56, 57, 1966080)
    srd(A, 32, 58, 59, 3072)
    A("s_cmp_eq_u32 s37, 0")
    A("s_cselect_b32 s20, s48, s50")
    A("s_cselect_b32 s21, s49, s51")
    A("s_mov_b32 s22, 25600")
    A("s_mov_b32 s23, 0x00020000")
    A("s_cmp_ge_u32 s38, 6")
    A(f"s_cbranch_scc1 L_{name}_roleQ")
    A("s_cmp_ge_u32 s38, 2")
    A(f"s_cbranch_scc1 L_{name}_roleH")
    A("s_cmp_ge_u32 s37, 2")
    A(f"s_cbranch_scc1 L_{name}_roleH")
    role_code(A, name, "K")
    A.label(f"L_{name}_roleH")
    role_code(A, name, "H")
    A.label(f"L_{name}_roleQ")
    role_code(A, name, "Q")
    A.label(f"L_{name}_end")
    A("s_endpgm")
    return A.text()

XR = 80
ACC = 128

def role_code(A, name, role):
    nW = {"K": 4, "H": 2, "Q": 3}[role]
    if role in "HK":
        A("s_mul_i32 s39, s37, 384")
        A("s_lshl_b32 s40, s38, 6")
        A("s_add_u32 s39, s39, s40")
        A("v_lshrrev_b32 v7, 5, v1")
        A("v_lshlrev_b32 v7, 3, v7")
        for q in range(4):
            A(f"buffer_load_dwordx2 {vr(120 + 2*q, 2)}, v7, s[32:35], s39 offen offset:{16*q}")
    if role in "HK":
        m24, s24 = magic(24, 768)
        for i in range(2):
            A("s_lshl_b32 s39, s38, 7")
            A(f"s_add_u32 s39, s39, {64*i}")
            A("v_add_u32 v7, s39, v1")
            A(f"v_mul_u32_u24 v8, {m24}, v7")
            A(f"v_lshrrev_b32 v8, {s24}, v8")
            A("v_mul_u32_u24 v9, 24, v8")
            A("v_sub_u32 v9, v7, v9")
            A("v_bfe_u32 v10, v8, 1, 1")
            A("v_lshlrev_b32 v10, 2, v10")
            A("v_xor_b32 v9, v9, v10")
            A("v_mul_u32_u24 v8, 3072, v8")
            A(f"v_lshl_add_u32 v{12+i}, v9, 4, v8")
        A("s_mul_i32 s71, s37, 384")
        A("s_mov_b32 s40, s71")
        if role == "K":
            A("v_lshlrev_b32 v15, 4, v1")
            A("v_add_u32 v14, 1024, v15")
            A("s_mov_b32 s42, 0")
    else:
        m12, s12 = magic(12, 384)
        for i in range(3):
            A("s_sub_u32 s39, s38, 6")
            A("s_mul_i32 s39, s39, 192")
            A(f"s_add_u32 s39, s39, {64*i}")
            A("v_add_u32 v7, s39, v1")
            A(f"v_mul_u32_u24 v8, {m12}, v7")
            A(f"v_lshrrev_b32 v8, {s12}, v8")
            A("v_mul_u32_u24 v9, 12, v8")
            A("v_sub_u32 v9, v7, v9")
            A("v_mul_u32_u24 v8, 1280, v8")
            A(f"v_lshl_add_u32 v{12+i}, v9, 4, v8")
            A("v_cmp_lt_u32 vcc, 9, v9")
            A("v_mov_b32 v10, 0x40000000")
            A("s_nop 0")
            A(f"v_cndmask_b32 v{12+i}, v{12+i}, v10, vcc")
        A("s_mul_i32 s41, s37, 160")
    def dma(stage):
        base = STG0 + stage * STG
        if role in "HK":
            A("s_lshl_b32 s39, s38, 11")
            for i in range(2):
                A(f"s_add_u32 m0, s39, {base + R_W1 + 1024*i}")
                A("s_nop 0")
                A(f"buffer_load_dwordx4 v{12+i}, s[16:19], s40 offen lds")
            A("s_add_u32 s40, s40, 98304")
            if role == "K":
                A(f"s_mov_b32 m0, {base + R_KV}")
                A("s_nop 0")
                A(f"buffer_load_dwordx4 v15, s[20:23], s42 offen lds")
                A(f"s_mov_b32 m0, {base + R_KV + 1024}")
                A("s_nop 0")
                A(f"buffer_load_dwordx4 v14, s[20:23], s42 offen lds")
                A("s_add_u32 s42, s42, 1280")
        else:
            A("s_sub_u32 s39, s38, 6")
            A("s_mul_i32 s39, s39, 3072")
            for i in range(3):
                A(f"s_add_u32 m0, s39, {base + R_WQ + 1024*i}")
                A("s_nop 0")
                A(f"buffer_load_dwordx4 v{12+i}, s[12:15], s41 offen lds")
            A("s_add_u32 s41, s41, 40960")
    for st in range(3):
        dma(st)
    nb = 4 if role in "HK" else 0
    A(f"s_waitcnt vmcnt({nb + 3*nW})")
    A("v_mov_b32 v16, 0x3f803f80")
    for p in range(2):
        S, Qs = 18 + 4*p, 20 + 4*p
        A(f"v_mov_b32 v{S}, 0")
        A(f"v_mov_b32 v{S+1}, 0")
        A(f"v_mov_b32 v{Qs}, 0")
        A(f"v_mov_b32 v{Qs+1}, 0")
    for p in range(2):
        S, Qs = 18 + 4*p, 20 + 4*p
        for i in range(20):
            x = XR + 20*p + i
            A(f"v_dot2_f32_bf16 v{S + (i&1)}, v{x}, v16, v{S + (i&1)}")
            A(f"v_dot2_f32_bf16 v{Qs + (i&1)}, v{x}, v{x}, v{Qs + (i&1)}")
    A("s_nop 3")
    for p in range(2):
        S, Qs = 18 + 4*p, 20 + 4*p
        A(f"v_add_f32 v{S}, v{S}, v{S+1}")
        A(f"v_add_f32 v{Qs}, v{Qs}, v{Qs+1}")
    for sh in (8, 4, 2, 1):
        A("s_nop 1")
        for p in range(2):
            S, Qs = 18 + 4*p, 20 + 4*p
            A(f"v_add_f32_dpp v{S}, v{S}, v{S} row_ror:{sh} row_mask:0xf bank_mask:0xf")
            A(f"v_add_f32_dpp v{Qs}, v{Qs}, v{Qs} row_ror:{sh} row_mask:0xf bank_mask:0xf")
    inv = f2u(1.0 / 640)
    A(f"s_mov_b32 s39, {inv}")
    A(f"s_mov_b32 s72, {f2u(1e-5)}")
    for p in range(2):
        S, Qs = 18 + 4*p, 20 + 4*p
        A(f"v_mul_f32 v{S}, s39, v{S}")
        A(f"v_mul_f32 v{Qs}, s39, v{Qs}")
        A(f"v_fma_f32 v{Qs}, -v{S}, v{S}, v{Qs}")
        A(f"v_max_f32 v{Qs}, 0, v{Qs}")
        A(f"v_add_f32 v{Qs}, s72, v{Qs}")
        A(f"v_rsq_f32 v{Qs}, v{Qs}")
        A("s_nop 0")
        A(f"v_mul_f32 v{S}, v{S}, v{Qs}")
        A(f"v_sub_f32 v{S}, 0, v{S}")
    for p in range(2):
        A(f"v_add_u32 v7, {4*p}, v5")
        A("v_and_b32 v8, 15, v7")
        A("v_xor_b32 v8, v8, v4")
        A("v_mul_u32_u24 v7, 1280, v7")
        A(f"v_lshl_add_u32 v{26+p}, v8, 4, v7")
    for p in range(2):
        S, Qs = 18 + 4*p, 20 + 4*p
        for i in range(5):
            for j in range(4):
                x = XR + 20*p + 4*i + j
                A(f"v_lshlrev_b32 v28, 16, v{x}")
                A(f"v_and_b32 v29, 0xffff0000, v{x}")
                A(f"v_fma_f32 v28, v28, v{Qs}, v{S}")
                A(f"v_fma_f32 v29, v29, v{Qs}, v{S}")
                A(f"v_cvt_pk_bf16_f32 v{x}, v28, v29")
            A(f"ds_write_b128 v{26+p}, {vr(XR + 20*p + 4*i, 4)} offset:{256*i}")
    if role in "HK":
        lT2 = A.newlabel("noT2")
        A("s_cmp_eq_u32 s64, 0")
        A(f"s_cbranch_scc1 {lT2}")
        A("v_lshrrev_b32 v16, 4, v1")
        A("v_bfe_u32 v17, v1, 2, 2")
        A("v_and_b32 v18, 3, v1")
        A("v_lshlrev_b32 v19, 3, v16")
        A("v_lshrrev_b32 v20, 1, v16")
        A("v_lshlrev_b32 v20, 4, v20")
        A("v_and_b32 v21, 1, v16")
        A("v_lshl_add_u32 v20, v21, 2, v20")
        A("s_cmp_eq_u32 s70, 1")
        A("s_cselect_b64 vcc, -1, 0")
        A("s_movk_i32 s73, 640")
        A("s_cselect_b32 s39, s73, 1280")
        A("v_cndmask_b32 v19, v20, v19, vcc")
        A("v_add_u32 v19, v19, v17")
        A("v_mul_u32_u24 v19, 160, v19")
        A("v_lshl_add_u32 v19, v18, 3, v19")
        A("v_add_u32 v19, s69, v19")
        A("v_add_u32 v20, s39, v19")
        for nt in range(5):
            A(f"ds_read_b64_tr_b16 {vr(32 + 4*nt, 2)}, v19 offset:{32*nt}")
            A(f"ds_read_b64_tr_b16 {vr(34 + 4*nt, 2)}, v20 offset:{32*nt}")
        A("s_mul_i32 s39, s66, 68")
        A("s_add_u32 s39, s39, s65")
        A("s_mul_i32 s39, s39, 5120")
        A(f"s_add_u32 s39, s39, {WS_W2T}")
        A("v_lshlrev_b32 v21, 4, v1")
        A("s_waitcnt lgkmcnt(0)")
        for nt in range(5):
            A(f"buffer_store_dwordx4 {vr(32 + 4*nt, 4)}, v21, s[24:27], s39 offen offset:{1024*nt if nt < 4 else 0}" if nt < 4 else
              f"s_add_u32 s39, s39, 4096\n buffer_store_dwordx4 {vr(32 + 4*nt, 4)}, v21, s[24:27], s39 offen")
        A.label(lT2)
    A("v_and_b32 v16, 31, v1")
    A("v_lshrrev_b32 v17, 5, v1")
    A("v_and_b32 v18, 15, v16")
    A("v_xor_b32 v18, v18, v17")
    A("v_mul_u32_u24 v19, 1280, v16")
    A("v_lshl_add_u32 v19, v18, 4, v19")
    if role == "Q":
        A("s_sub_u32 s39, s38, 6")
        A("s_mul_i32 s39, s39, 40960")
        A("v_add_u32 v19, s39, v19")
    A("v_lshrrev_b32 v20, 5, v1")
    A("v_bfe_u32 v21, v1, 2, 2")
    A("v_lshl_add_u32 v20, v20, 3, v21")
    A("v_bfe_u32 v22, v1, 4, 1")
    A("v_and_b32 v23, 3, v1")
    A("v_lshlrev_b32 v23, 3, v23")
    A("v_lshl_add_u32 v23, v22, 5, v23")
    if role in "HK":
        A("v_mul_u32_u24 v10, 384, v20")
        A("v_lshrrev_b32 v24, 1, v21")
        A("v_xor_b32 v24, s38, v24")
        A("v_lshl_add_u32 v10, v24, 6, v10")
        A("v_add_u32 v10, v10, v23")
        A(f"v_add_u32 v10, {STG0 + R_W1}, v10")
    else:
        A("v_mul_u32_u24 v10, 192, v20")
        A("v_add_u32 v10, v10, v23")
        A(f"v_add_u32 v10, {STG0 + R_WQ}, v10")
    A(f"v_add_u32 v11, {2*STG}, v10")
    if role == "K":
        A("v_mul_u32_u24 v30, 40, v20")
        A("v_add_u32 v30, v30, v23")
        A(f"v_add_u32 v30, {STG0 + R_KV}, v30")
        A(f"v_add_u32 v31, {2*STG}, v30")
    for k in range(8):
        A(f"v_xor_b32 v{2+k}, {k << 5}, v19")
    SET = (32, 64)
    if role in "HK":
        A(f"s_waitcnt vmcnt({3*nW})")
        for q in range(4):
            for rt in range(2):
                a = ACC + 16*rt + 4*q
                A(f"v_lshlrev_b32 v{a}, 16, v{120+2*q}")
                A(f"v_and_b32 v{a+1}, 0xffff0000, v{120+2*q}")
                A(f"v_lshlrev_b32 v{a+2}, 16, v{121+2*q}")
                A(f"v_and_b32 v{a+3}, 0xffff0000, v{121+2*q}")
        if role == "K":
            for r in range(16):
                A(f"v_mov_b32 v{ACC+32+r}, 0")
    else:
        for r in range(48):
            A(f"v_mov_b32 v{ACC+r}, 0")

    def reads(chunk_s, st):
        L = []
        b = SET[st]
        wbase = 10 if chunk_s < 2 else 11
        so = (chunk_s % 2) * STG
        for ks in range(2):
            xa = 2 + 2*chunk_s + ks
            if role in "HK":
                for rt in range(2):
                    L.append(f"ds_read_b128 {vr(b + 8*ks + 4*rt, 4)}, v{xa} offset:{40960*rt}")
                rs = 384
                L.append(f"ds_read_b64_tr_b16 {vr(b + 16 + 4*ks, 2)}, v{wbase} offset:{so + 16*ks*rs}")
                L.append(f"ds_read_b64_tr_b16 {vr(b + 18 + 4*ks, 2)}, v{wbase} offset:{so + (16*ks+4)*rs}")
                if role == "K":
                    kb = 30 if chunk_s < 2 else 31
                    L.append(f"ds_read_b64_tr_b16 {vr(b + 24 + 4*ks, 2)}, v{kb} offset:{so + 16*ks*40}")
                    L.append(f"ds_read_b64_tr_b16 {vr(b + 26 + 4*ks, 2)}, v{kb} offset:{so + (16*ks+4)*40}")
            else:
                L.append(f"ds_read_b128 {vr(b + 4*ks, 4)}, v{xa}")
                rs = 192
                for ct in range(3):
                    L.append(f"ds_read_b64_tr_b16 {vr(b + 8 + 12*ks + 4*ct, 2)}, v{wbase} offset:{so + 16*ks*rs + 64*ct}")
                    L.append(f"ds_read_b64_tr_b16 {vr(b + 10 + 12*ks + 4*ct, 2)}, v{wbase} offset:{so + (16*ks+4)*rs + 64*ct}")
        return L
    def mfmas(st):
        L = []
        b = SET[st]
        for ks in range(2):
            if role in "HK":
                for rt in range(2):
                    a = ACC + 16*rt
                    L.append(f"v_mfma_f32_32x32x16_bf16 {vr(a,16)}, {vr(b + 16 + 4*ks, 4)}, {vr(b + 8*ks + 4*rt, 4)}, {vr(a,16)}")
                if role == "K":
                    a = ACC + 32
                    L.append(("KV", ks))
            else:
                for ct in range(3):
                    a = ACC + 16*ct
                    L.append(f"v_mfma_f32_32x32x16_bf16 {vr(a,16)}, {vr(b + 8 + 12*ks + 4*ct, 4)}, {vr(b + 4*ks, 4)}, {vr(a,16)}")
        return L
    if role == "K":
        pass
    A("s_waitcnt lgkmcnt(0)")
    A(f"s_waitcnt vmcnt({2*nW})")
    A("s_barrier")
    dma(3)
    for ln in reads(0, 0):
        A(ln)
    A("s_mov_b32 s43, 5")
    lp = A.newlabel("k1loop")
    A.label(lp)
    for s in range(4):
        st = s % 2
        A(f"s_waitcnt vmcnt({2*nW}) lgkmcnt(0)")
        A("s_barrier")
        ms = mfmas(st)
        if s == 3:
            pre = [f"v_add_u32 v{2+k}, 256, v{2+k}" for k in range(8)]
        else:
            pre = []
        rd = reads((s + 1) % 4, 1 - st)
        def emit_m(m):
            if isinstance(m, tuple):
                ks = m[1]
                b = SET[st]
                a = ACC + 32
                la = A.newlabel("kv")
                lb = A.newlabel("kve")
                A("s_cmp_eq_u32 s38, 0")
                A(f"s_cbranch_scc0 {la}")
                A(f"v_mfma_f32_32x32x16_bf16 {vr(a,16)}, {vr(b + 24 + 4*ks, 4)}, {vr(b + 8*ks, 4)}, {vr(a,16)}")
                A(f"s_branch {lb}")
                A.label(la)
                A(f"v_mfma_f32_32x32x16_bf16 {vr(a,16)}, {vr(b + 24 + 4*ks, 4)}, {vr(b + 8*ks + 4, 4)}, {vr(a,16)}")
                A.label(lb)
            else:
                A(m)
        emit_m(ms[0])
        dma(s)
        for ln in pre:
            A(ln)
        rest = ms[1:]
        per = (len(rd) + len(rest) - 1) // len(rest)
        ri = 0
        for m in rest:
            for ln in rd[ri:ri+per]:
                A(ln)
            ri += per
            emit_m(m)
        for ln in rd[ri:]:
            A(ln)
    A("s_sub_u32 s43, s43, 1")
    A("s_cmp_lg_u32 s43, 0")
    A(f"s_cbranch_scc1 {lp}")
    A("s_nop 15")
    A("s_nop 7")
    A("v_and_b32 v16, 31, v1")
    A("v_lshrrev_b32 v17, 5, v1")
    if role in "HK":
        A("v_lshrrev_b32 v18, 4, v16")
        A("v_mul_u32_u24 v18, 49152, v18")
        A("v_and_b32 v19, 15, v16")
        A("v_lshl_add_u32 v19, v17, 4, v19")
        A("v_lshl_add_u32 v18, v19, 4, v18")
        for rt in range(2):
            A("s_lshl_b32 s39, s36, 2")
            A(f"s_add_u32 s39, s39, {2*rt}")
            A("s_mul_i32 s39, s39, 48")
            A("s_mul_i32 s40, s37, 6")
            A("s_add_u32 s39, s39, s40")
            A("s_add_u32 s39, s39, s38")
            A("s_lshl_b32 s39, s39, 10")
            A(f"s_add_u32 s39, s39, {WS_H}")
            a = ACC + 16*rt
            for r in range(16):
                A(f"v_max_f32 v{a+r}, 0, v{a+r}")
            for r in range(16):
                A(f"v_mul_f32 v{a+r}, v{a+r}, v{a+r}")
            for u in range(2):
                for j in range(4):
                    A(f"v_cvt_pk_bf16_f32 v{32 + 8*rt + 4*u + j}, v{a + 8*u + 2*j}, v{a + 8*u + 2*j + 1}")
                A(f"buffer_store_dwordx4 {vr(32 + 8*rt + 4*u, 4)}, v18, s[24:27], s39 offen offset:{512*u}")
        if role == "K":
            a = ACC + 32
            for j in range(6):
                A(f"v_cvt_pk_bf16_f32 v{48 + j}, v{a + 2*j}, v{a + 2*j + 1}")
            A("s_lshl_b32 s39, s36, 1")
            A("s_add_u32 s39, s39, s38")
            A("s_mul_i32 s39, s39, 1280")
            lv = A.newlabel("isV"); le = A.newlabel("kvdone")
            A("s_cmp_eq_u32 s37, 0")
            A(f"s_cbranch_scc0 {lv}")
            A(f"s_add_u32 s39, s39, {WS_K}")
            A("v_lshlrev_b32 v20, 4, v16")
            A("v_lshl_add_u32 v20, v17, 3, v20")
            A(f"buffer_store_dwordx2 {vr(48,2)}, v20, s[24:27], s39 offen")
            A(f"buffer_store_dwordx2 {vr(50,2)}, v20, s[24:27], s39 offen offset:512")
            A("v_lshlrev_b32 v21, 3, v16")
            A("v_mov_b32 v22, 0x40000000")
            A("v_cmp_eq_u32 vcc, 0, v17")
            A("s_nop 1")
            A("v_cndmask_b32 v21, v22, v21, vcc")
            A(f"buffer_store_dwordx2 {vr(52,2)}, v21, s[24:27], s39 offen offset:1024")
            A(f"s_branch {le}")
            A.label(lv)
            A(f"s_add_u32 s39, s39, {WS_V}")
            A("v_lshrrev_b32 v20, 4, v16")
            A("v_mul_u32_u24 v20, 640, v20")
            A("v_bfe_u32 v21, v16, 2, 1")
            A("v_mul_u32_u24 v21, 320, v21")
            A("v_add_u32 v20, v20, v21")
            A("v_bfe_u32 v21, v16, 3, 1")
            A("v_lshl_add_u32 v20, v21, 3, v20")
            A("v_and_b32 v21, 3, v16")
            A("v_lshl_add_u32 v20, v21, 1, v20")
            A("v_lshl_add_u32 v20, v17, 6, v20")
            A("v_mov_b32 v22, 0x40000000")
            A("v_cmp_eq_u32 vcc, 0, v17")
            A("s_nop 1")
            A("v_cndmask_b32 v21, v22, v20, vcc")
            for r in range(12):
                off = (r % 4) * 16 + (r // 4) * 128
                va = 20 if r < 8 else 21
                op = "buffer_store_short" if r % 2 == 0 else "buffer_store_short_d16_hi"
                A(f"{op} v{48 + r//2}, v{va}, s[24:27], s39 offen offset:{off}")
            A.label(le)
    else:
        A(f"s_mov_b32 s40, {f2u(QSCALE)}")
        A("v_mul_u32_u24 v18, 1280, v16")
        A("v_lshl_add_u32 v18, v17, 3, v18")
        A("s_lshl_b32 s39, s36, 1")
        A("s_add_u32 s39, s39, s38")
        A("s_sub_u32 s39, s39, 6")
        A("s_mul_i32 s39, s39, 40960")
        A("s_mul_i32 s41, s37, 160")
        A("s_add_u32 s39, s39, s41")
        if WS_Q:
            A(f"s_add_u32 s39, s39, {WS_Q}")
        for ct in range(3):
            a = ACC + 16*ct
            nq = 4 if ct < 2 else 2
            for r in range(4*nq):
                A(f"v_mul_f32 v{a+r}, s40, v{a+r}")
            for q in range(nq):
                A(f"v_cvt_pk_bf16_f32 v{32 + 8*ct + 2*q}, v{a + 4*q}, v{a + 4*q + 1}")
                A(f"v_cvt_pk_bf16_f32 v{33 + 8*ct + 2*q}, v{a + 4*q + 2}, v{a + 4*q + 3}")
                A(f"buffer_store_dwordx2 {vr(32 + 8*ct + 2*q, 2)}, v18, s[24:27], s39 offen offset:{64*ct + 16*q}")
    A("s_waitcnt vmcnt(0)")
    A("s_endpgm")
```

```python
from asmlib import *
from k1 import WS_Q, WS_K, WS_V, WS_H, WS_W2T, WS_O, WS_SIZE, f2u
from k3 import ids

SA, SB, PA, PB, OA, OB = 16, 32, 48, 56, 64, 80
Q1A, Q2A, Q1B, Q2B, K1, K2, V1, V2 = 96, 100, 104, 108, 112, 116, 120, 124
OFF = 88.0
VMASK = 0x000FFFFF

def qk(A, S, Q1, Q2):
    return [f"v_mfma_f32_32x32x16_bf16 {vr(S,16)}, {vr(K1,4)}, {vr(Q1,4)}, 0",
            f"v_mfma_f32_32x32x16_bf16 {vr(S,16)}, {vr(K2,4)}, {vr(Q2,4)}, {vr(S,16)}"]
def pv(O, P):
    return [f"v_mfma_f32_32x32x16_bf16 {vr(O,16)}, {vr(V1,4)}, {vr(P,4)}, {vr(O,16)}",
            f"v_mfma_f32_32x32x16_bf16 {vr(O,16)}, {vr(V2,4)}, {vr(P+4,4)}, {vr(O,16)}"]

def readK(A, off):
    A(f"ds_read_b128 {vr(K1,4)}, v2 offset:{off}")
    A(f"ds_read_b64 {vr(K2,2)}, v3 offset:{off}")
def readV(A, off):
    A("s_mov_b64 exec, s[60:61]")
    A(f"ds_read_b128 {vr(V1,4)}, v4 offset:{off}")
    A(f"ds_read_b128 {vr(V2,4)}, v4 offset:{off + 640}")
    A("s_mov_b64 exec, -1")

def half(A, S, P, ms, hooks):
    e = [f"v_exp_f32 v{S+i}, v{S+i}" for i in range(16)]
    c = [f"v_cvt_pk_bf16_f32 v{P+i}, v{S+2*i}, v{S+2*i+1}" for i in range(8)]
    def M(i):
        if ("pre", i) in hooks: hooks[("pre", i)]()
        A(ms[i])
        if i in hooks: hooks[i]()
    M(0)
    for x in e[0:4]: A(x)
    M(1)
    for x in e[4:8]: A(x)
    A(c[0]); A(c[1])
    M(2)
    for x in e[8:12]: A(x)
    A(c[2]); A(c[3])
    M(3)
    for x in e[12:16]: A(x)
    for x in c[4:8]: A(x)

def setm(A, Q2, M):
    A(f"v_sub_f32 v7, 0, v{M}")
    A(f"v_and_b32 v8, 0xffff0000, v7")
    A(f"v_sub_f32 v7, v7, v8")
    A(f"v_and_b32 v9, 0xffff0000, v7")
    A(f"v_sub_f32 v7, v7, v9")
    A(f"v_lshrrev_b32 v8, 16, v8")
    A(f"v_or_b32 v8, v8, v9")
    A(f"v_lshrrev_b32 v7, 16, v7")
    A(f"v_cndmask_b32 v{Q2+2}, 0, v8, s[62:63]")
    A(f"v_cndmask_b32 v{Q2+3}, 0, v7, s[62:63]")

def rowmax16(A, S, dst, first):
    if first:
        A(f"v_max3_f32 v{dst}, v{S}, v{S+1}, v{S+2}")
        i = 3
    else:
        i = 0
    while i + 1 < 16:
        A(f"v_max3_f32 v{dst}, v{dst}, v{S+i}, v{S+i+1}")
        i += 2
    if i < 16:
        A(f"v_max_f32 v{dst}, v{dst}, v{S+i}")

def crossmax(A, M):
    A(f"v_mov_b32 v7, v{M}")
    A("s_nop 1")
    A(f"v_permlane32_swap_b32 v7, v{M}")
    A("s_nop 1")
    A(f"v_max_f32 v{M}, v{M}, v7")

def gen_k2(name):
    A = Asm()
    A.label(name)
    A("s_cmp_ge_u32 s2, 256")
    A(f"s_cbranch_scc1 L_{name}_end")
    A("s_load_dwordx2 s[62:63], s[0:1], 96")
    ids(A)
    A("v_lshlrev_b32 v2, 4, v1")
    A("s_waitcnt lgkmcnt(0)")
    srd(A, 24, 62, 63, WS_SIZE)
    A("s_and_b32 s42, s38, 3")
    A("s_lshl_b32 s43, s37, 2")
    A("s_add_u32 s42, s42, s43")
    A("s_lshr_b32 s43, s38, 2")
    A("v_and_b32 v7, 31, v1")
    A("v_lshrrev_b32 v8, 5, v1")
    A("v_mul_u32_u24 v9, 1280, v7")
    A("v_lshl_add_u32 v10, v8, 4, v9")
    A("v_cmp_eq_u32 s[62:63], 0, v8")
    A("v_add_u32 v9, 32, v9")
    A("v_mov_b32 v11, 0x40000000")
    A("s_mul_i32 s44, s36, 81920")
    A("s_mul_i32 s45, s42, 40")
    A("s_add_u32 s44, s44, s45")
    if WS_Q: A(f"s_add_u32 s44, s44, {WS_Q}")
    A("s_add_u32 s45, s44, 40960")
    A("v_cndmask_b32 v9, v11, v9, s[62:63]")
    A(f"buffer_load_dwordx4 {vr(Q1A,4)}, v10, s[24:27], s44 offen")
    A(f"buffer_load_dwordx2 {vr(Q2A,2)}, v9, s[24:27], s44 offen")
    A(f"buffer_load_dwordx4 {vr(Q1B,4)}, v10, s[24:27], s45 offen")
    A(f"buffer_load_dwordx2 {vr(Q2B,2)}, v9, s[24:27], s45 offen")
    A("s_lshl_b32 s46, s38, 10")
    A(f"s_add_u32 s47, s46, {WS_K}")
    for i in range(20):
        A(f"s_add_u32 m0, s46, {8192*i}")
        A(f"s_add_u32 s48, s47, {8192*i}")
        A(f"buffer_load_dwordx4 v2, s[24:27], s48 offen lds")
    A("s_mul_i32 s49, s43, 40960")
    A("v_add_u32 v2, s49, v2")
    A("v_lshlrev_b32 v3, 3, v7")
    A("v_add_u32 v3, s49, v3")
    A("v_add_u32 v3, 1024, v3")
    A("v_mul_u32_u24 v4, 320, v8")
    A("v_lshl_add_u32 v4, v7, 4, v4")
    A("v_add_u32 v4, s49, v4")
    A("v_add_u32 v4, 81920, v4")
    A(f"s_mov_b32 s60, {VMASK}")
    A(f"s_mov_b32 s61, {VMASK}")
    A(f"v_mov_b32 v{K2+2}, 0x3f803f80")
    A(f"v_mov_b32 v{K2+3}, 0x00003f80")
    A("v_cmp_eq_u32 vcc, 20, v7")
    A("v_mov_b32 v12, 0x3f803f80")
    A("s_nop 0")
    for r in range(8):
        A(f"v_cndmask_b32 v{V1+r}, 0, v12, vcc")
    A("s_mov_b32 s50, 0")
    A("s_waitcnt vmcnt(0)")
    A("s_barrier")
    for Q2 in (Q2A, Q2B):
        A(f"v_mov_b32 v{Q2+2}, 0")
        A(f"v_mov_b32 v{Q2+3}, 0")
    for tile in range(2):
        readK(A, 1280*tile)
        A("s_waitcnt lgkmcnt(0)")
        for m in qk(A, SA, Q1A, Q2A): A(m)
        for m in qk(A, SB, Q1B, Q2B): A(m)
        A("s_nop 15")
        A("s_nop 3")
        rowmax16(A, SA, 5, tile == 0)
        rowmax16(A, SB, 6, tile == 0)
    lmain = A.newlabel("main")
    for M in (5, 6):
        crossmax(A, M)
        A(f"v_add_f32 v{M}, {f2u(OFF)}, v{M}")
    A.label(lmain)
    setm(A, Q2A, 5)
    setm(A, Q2B, 6)
    for r in range(16):
        A(f"v_mov_b32 v{OA+r}, 0")
        A(f"v_mov_b32 v{OB+r}, 0")
    for r in range(8):
        A(f"v_mov_b32 v{PB+r}, 0")
    A("v_mov_b32 v13, v2")
    A("v_mov_b32 v14, v3")
    A("v_mov_b32 v15, v4")
    readK(A, 0)
    readV(A, 0)
    A("s_waitcnt lgkmcnt(0)")
    for m in qk(A, SA, Q1A, Q2A): A(m)
    A("s_nop 15")
    A("s_mov_b32 s51, 8")
    lp = A.newlabel("loop")
    A.label(lp)
    U = 4
    for t in range(U):
        o = 1280*t
        ms = qk(A, SB, Q1B, Q2B) + pv(OB, PB)
        hooks = {1: (lambda o=o: readK(A, o + 1280)), 3: (lambda o=o: readV(A, o))}
        half(A, SA, PA, ms, hooks)
        ms = qk(A, SA, Q1A, Q2A) + pv(OA, PA)
        hooks = {("pre", 0): (lambda: A("s_waitcnt lgkmcnt(2)")), ("pre", 2): (lambda: A("s_waitcnt lgkmcnt(0)"))}
        half(A, SB, PB, ms, hooks)
    for r in (2, 3, 4):
        A(f"v_add_u32 v{r}, {1280*U}, v{r}")
    A("s_sub_u32 s51, s51, 1")
    A("s_cmp_lg_u32 s51, 0")
    A(f"s_cbranch_scc1 {lp}")
    A("s_nop 1")
    for m in pv(OB, PB): A(m)
    A("v_mov_b32 v2, v13")
    A("v_mov_b32 v3, v14")
    A("v_mov_b32 v4, v15")
    A("s_nop 15")
    A("s_nop 3")
    lok = A.newlabel("ok")
    A("v_mov_b32 v7, 0")
    for O in (OA, OB):
        for r in range(12):
            A(f"v_fma_f32 v7, v{O+r}, 0, v7")
    A("v_cmp_u_f32 vcc, v7, v7")
    A("s_cmp_lg_u32 s50, 0")
    A(f"s_cbranch_scc1 {lok}")
    A("s_nop 3")
    A("s_cmp_eq_u64 vcc, 0")
    A(f"s_cbranch_scc1 {lok}")
    A("s_mov_b32 s50, 1")
    for Q2 in (Q2A, Q2B):
        A(f"v_mov_b32 v{Q2+2}, 0")
        A(f"v_mov_b32 v{Q2+3}, 0")
    A("v_mov_b32 v5, 0xff800000")
    A("v_mov_b32 v6, 0xff800000")
    A("s_mov_b32 s51, 32")
    lf = A.newlabel("fb")
    A.label(lf)
    readK(A, 0)
    A("s_waitcnt lgkmcnt(0)")
    for m in qk(A, SA, Q1A, Q2A): A(m)
    for m in qk(A, SB, Q1B, Q2B): A(m)
    A("s_nop 15")
    A("s_nop 3")
    rowmax16(A, SA, 5, False)
    rowmax16(A, SB, 6, False)
    A("v_add_u32 v2, 1280, v2")
    A("v_add_u32 v3, 1280, v3")
    A("s_sub_u32 s51, s51, 1")
    A("s_cmp_lg_u32 s51, 0")
    A(f"s_cbranch_scc1 {lf}")
    A("v_mov_b32 v2, v13")
    A("v_mov_b32 v3, v14")
    crossmax(A, 5)
    crossmax(A, 6)
    A(f"s_branch {lmain}")
    A.label(lok)
    A("s_barrier")
    A("v_lshlrev_b32 v7, 4, v1")
    A("s_lshl_b32 s52, s38, 12")
    A("v_add_u32 v7, s52, v7")
    A("v_lshlrev_b32 v8, 2, v1")
    A("v_add_u32 v8, s52, v8")
    lb = A.newlabel("sendA"); lc = A.newlabel("sent")
    A("s_cmp_eq_u32 s43, 0")
    A(f"s_cbranch_scc0 {lb}")
    for i in range(3):
        A(f"ds_write_b128 v7, {vr(OB + 4*i, 4)} offset:{1024*i}")
    A("ds_write_b32 v8, v6 offset:3072")
    A(f"s_branch {lc}")
    A.label(lb)
    for i in range(3):
        A(f"ds_write_b128 v7, {vr(OA + 4*i, 4)} offset:{1024*i}")
    A("ds_write_b32 v8, v5 offset:3072")
    for r in range(12):
        A(f"v_mov_b32 v{OA+r}, v{OB+r}")
    A("v_mov_b32 v5, v6")
    A.label(lc)
    A("s_waitcnt lgkmcnt(0)")
    A("s_barrier")
    A("s_xor_b32 s52, s38, 4")
    A("s_lshl_b32 s52, s52, 12")
    A("v_lshlrev_b32 v7, 4, v1")
    A("v_add_u32 v7, s52, v7")
    A("v_lshlrev_b32 v8, 2, v1")
    A("v_add_u32 v8, s52, v8")
    for i in range(3):
        A(f"ds_read_b128 {vr(OB + 4*i, 4)}, v7 offset:{1024*i}")
    A("ds_read_b32 v6, v8 offset:3072")
    A("s_waitcnt lgkmcnt(0)")
    A("v_max_f32 v9, v5, v6")
    A("v_sub_f32 v5, v5, v9")
    A("v_sub_f32 v6, v6, v9")
    A("v_exp_f32 v5, v5")
    A("v_exp_f32 v6, v6")
    A("s_nop 0")
    for r in range(12):
        A(f"v_mul_f32 v{OA+r}, v{OA+r}, v5")
    for r in range(12):
        A(f"v_fma_f32 v{OA+r}, v{OB+r}, v6, v{OA+r}")
    A(f"v_mov_b32 v9, v{OA+8}")
    A(f"v_mov_b32 v10, v{OA+8}")
    A("s_nop 1")
    A("v_permlane32_swap_b32 v9, v10")
    A("s_nop 1")
    A("v_rcp_f32 v10, v10")
    A("s_nop 0")
    for r in range(12):
        A(f"v_mul_f32 v{OA+r}, v{OA+r}, v10")
    for j in range(6):
        A(f"v_cvt_pk_bf16_f32 v{SA+j}, v{OA+2*j}, v{OA+2*j+1}")
    A("v_and_b32 v7, 31, v1")
    A("v_lshrrev_b32 v8, 4, v7")
    A("v_mul_u32_u24 v8, 20480, v8")
    A("v_and_b32 v9, 15, v7")
    A("v_lshl_add_u32 v8, v9, 4, v8")
    A("s_lshl_b32 s52, s36, 2")
    A("s_lshl_b32 s53, s43, 1")
    A("s_add_u32 s52, s52, s53")
    A("s_mul_i32 s52, s52, 20480")
    A(f"s_add_u32 s52, s52, {WS_O}")
    A("s_mul_i32 s53, s42, 20")
    for q in range(3):
        for h in range(2):
            d = 54 + h
            A(f"s_add_u32 s56, s53, {8*q + 4*h}")
            A(f"s_lshr_b32 s{d}, s56, 5")
            A(f"s_lshl_b32 s{d}, s{d}, 10")
            A(f"s_bfe_u32 s57, s56, 0x20003")
            A(f"s_lshl_b32 s57, s57, 8")
            A(f"s_add_u32 s{d}, s{d}, s57")
            A(f"s_and_b32 s57, s56, 7")
            A(f"s_lshl_b32 s57, s57, 1")
            A(f"s_add_u32 s{d}, s{d}, s57")
        if q == 2:
            A("s_mov_b32 s55, 0x40000000")
        A("v_mov_b32 v9, s55")
        A("v_mov_b32 v10, s54")
        A("v_cndmask_b32 v9, v9, v10, s[62:63]")
        A("v_add_u32 v9, v9, v8")
        A(f"buffer_store_dwordx2 {vr(SA + 2*q, 2)}, v9, s[24:27], s52 offen")
    A.label(f"L_{name}_end")
    A("s_endpgm")
    return A.text()
```

```python
from asmlib import *
from k1 import WS_Q, WS_K, WS_V, WS_H, WS_W2T, WS_O, WS_SIZE

def ids(A):
    A("s_and_b32 s39, s2, 7")
    A("s_lshr_b32 s40, s2, 3")
    A("s_lshl_b32 s36, s39, 2")
    A("s_lshr_b32 s41, s40, 3")
    A("s_add_u32 s36, s36, s41")
    A("s_and_b32 s37, s40, 7")
    A("v_lshrrev_b32 v2, 6, v0")
    A("v_and_b32 v1, 63, v0")
    A("v_readfirstlane_b32 s38, v2")

def gen_k3(name):
    A = Asm()
    A.label(name)
    A("s_cmp_ge_u32 s2, 256")
    A(f"s_cbranch_scc1 L_{name}_end")
    A("s_load_dwordx2 s[44:45], s[0:1], 0")
    A("s_load_dwordx4 s[48:51], s[0:1], 72")
    A("s_load_dwordx2 s[62:63], s[0:1], 96")
    ids(A)
    A("v_lshlrev_b32 v2, 4, v1")
    A("s_waitcnt lgkmcnt(0)")
    srd(A, 8, 44, 45, 2621440)
    srd(A, 12, 48, 49, 1280)
    srd(A, 16, 50, 51, 2621440)
    srd(A, 24, 62, 63, WS_SIZE)
    ACC = 0 + 8
    NST = 4
    BUF = [ACC + 80 + 36*i for i in range(NST)]
    XB = 232
    A("v_and_b32 v3, 15, v1")
    A("v_lshrrev_b32 v4, 4, v1")
    A("v_mul_u32_u24 v5, 1280, v3")
    A("v_lshl_add_u32 v5, v4, 3, v5")
    A("v_lshlrev_b32 v6, 3, v4")
    A("s_lshl_b32 s39, s36, 2")
    A("s_add_u32 s39, s39, s38")
    A("s_mul_i32 s39, s39, 20480")
    A("s_mul_i32 s40, s37, 160")
    A("s_add_u32 s52, s39, s40")
    A("s_mov_b32 s53, s40")
    for nt in range(5):
        A(f"buffer_load_dwordx2 {vr(XB + 2*nt, 2)}, v5, s[8:11], s52 offen offset:{32*nt}")
    for nt in range(5):
        A(f"buffer_load_dwordx2 {vr(XB + 10 + 2*nt, 2)}, v6, s[12:15], s53 offen offset:{32*nt}")
    A("s_mul_i32 s54, s37, 68")
    A("s_add_u32 s54, s54, s38")
    A("s_mul_i32 s54, s54, 5120")
    A(f"s_add_u32 s54, s54, {WS_W2T}")
    for j in range(4):
        A("s_lshl_b32 s39, s36, 2")
        A(f"s_add_u32 s39, s39, {j}")
        A("s_mul_i32 s39, s39, 20")
        A("s_add_u32 s39, s39, s38")
        A("s_lshl_b32 s39, s39, 10")
        A(f"s_add_u32 s{56+j}, s39, {WS_O}")
    def loads(i):
        b = BUF[i % NST]
        if i == 5:
            for j in range(4):
                A("s_lshl_b32 s39, s36, 2")
                A(f"s_add_u32 s39, s39, {j}")
                A("s_mul_i32 s39, s39, 48")
                A("s_add_u32 s39, s39, s38")
                A("s_lshl_b32 s39, s39, 10")
                A(f"s_add_u32 s{56+j}, s39, {WS_H}")
        A("s_add_u32 s55, s54, 4096")
        for nt in range(4):
            A(f"buffer_load_dwordx4 {vr(b + 4*nt, 4)}, v2, s[24:27], s54 offen offset:{1024*nt}")
        A(f"buffer_load_dwordx4 {vr(b + 16, 4)}, v2, s[24:27], s55 offen")
        for j in range(4):
            A(f"buffer_load_dwordx4 {vr(b + 20 + 4*j, 4)}, v2, s[24:27], s{56+j} offen")
        A(f"s_add_u32 s54, s54, {4*5120}")
        for j in range(4):
            A(f"s_add_u32 s{56+j}, s{56+j}, 4096")
    N = 17
    for i in range(3):
        loads(i)
    for r in range(80):
        A(f"v_mov_b32 v{ACC + r}, 0")
    for i in range(N):
        if i + 3 < N:
            loads(i + 3)
        later = min(N - 1, i + 3) - i
        A(f"s_waitcnt vmcnt({9*later})")
        b = BUF[i % NST]
        for j in range(4):
            for nt in range(5):
                a = ACC + 20*j + 4*nt
                A(f"v_mfma_f32_16x16x32_bf16 {vr(a,4)}, {vr(b + 4*nt, 4)}, {vr(b + 20 + 4*j, 4)}, {vr(a,4)}")
    A("s_nop 7")
    A("s_nop 3")
    for dj in range(1, 4):
        A(f"s_add_u32 s39, s38, {dj}")
        A("s_and_b32 s39, s39, 3")
        A("s_mul_i32 s40, s39, 15360")
        A(f"s_add_u32 s40, s40, {(3 - dj) * 5120}")
        A("v_add_u32 v7, s40, v2")
        done = A.newlabel("wdone")
        for j in range(4):
            nxt = A.newlabel("wn")
            A(f"s_cmp_eq_u32 s39, {j}")
            A(f"s_cbranch_scc0 {nxt}")
            for nt in range(5):
                A(f"ds_write_b128 v7, {vr(ACC + 20*j + 4*nt, 4)} offset:{1024*nt}")
            A(f"s_branch {done}")
            A.label(nxt)
        A.label(done)
    done = A.newlabel("mdone")
    for j in range(4):
        nxt = A.newlabel("mn")
        A(f"s_cmp_eq_u32 s38, {j}")
        A(f"s_cbranch_scc0 {nxt}")
        for r in range(20):
            A(f"v_mov_b32 v{88 + r}, v{ACC + 20*j + r}")
        A(f"s_branch {done}")
        A.label(nxt)
    A.label(done)
    A("s_waitcnt lgkmcnt(0)")
    A("s_barrier")
    A("s_mul_i32 s40, s38, 15360")
    A("v_add_u32 v7, s40, v2")
    for idx in range(3):
        for nt in range(5):
            A(f"ds_read_b128 {vr(112 + 20*idx + 4*nt, 4)}, v7 offset:{5120*idx + 1024*nt}")
    A("s_waitcnt lgkmcnt(0)")
    for r in range(20):
        A(f"v_add_f32 v{88+r}, v{88+r}, v{112+r}")
        A(f"v_add_f32 v{132+r}, v{132+r}, v{152+r}")
    for r in range(20):
        A(f"v_add_f32 v{88+r}, v{88+r}, v{132+r}")
    for nt in range(5):
        for hw in range(2):
            xr = XB + 2*nt + hw
            br = XB + 10 + 2*nt + hw
            a = 88 + 4*nt + 2*hw
            A(f"v_lshlrev_b32 v8, 16, v{xr}")
            A(f"v_and_b32 v9, 0xffff0000, v{xr}")
            A(f"v_lshlrev_b32 v10, 16, v{br}")
            A(f"v_and_b32 v11, 0xffff0000, v{br}")
            A(f"v_add_f32 v{a}, v{a}, v8")
            A(f"v_add_f32 v{a+1}, v{a+1}, v9")
            A(f"v_add_f32 v{a}, v{a}, v10")
            A(f"v_add_f32 v{a+1}, v{a+1}, v11")
            A(f"v_cvt_pk_bf16_f32 v{112 + 2*nt + hw}, v{a}, v{a+1}")
        A(f"buffer_store_dwordx2 {vr(112 + 2*nt, 2)}, v5, s[16:19], s52 offen offset:{32*nt}")
    A.label(f"L_{name}_end")
    A("s_endpgm")
    return A.text()
```

```python
import sys
from asmlib import *
from k1 import gen_k1, WS_SIZE
from k2 import gen_k2
from k3 import gen_k3
ref = open("parallel_sum__grouped_kv_mqa__dense_activation_squared_relu__prompt.s.ref").read()
hdr = []
for ln in ref.split("\n"):
    if ln.startswith("; Override") or ln.startswith("; grid=") or "@launch" in ln or not ln.startswith(";"):
        if not ln.startswith(";"): break
        continue
    hdr.append(ln)
kernels = [("k1_kernel", gen_k1, 256, 512, 163840, 176), ("k2_kernel", gen_k2, 256, 512, 163840, 128), ("k3_kernel", gen_k3, 256, 256, 61440, 252)]
out = "\n".join(hdr) + "\n"
for n, g, grid, blk, lds, vg in kernels:
    out += f"; @launch kernel={n} grid=({grid},1,1) block=({blk},1,1) lds={lds}\n"
out += '.amdgcn_target "amdgcn-amd-amdhsa--gfx950"\n.text\n'
for n, g, grid, blk, lds, vg in kernels:
    out += f".globl {n}\n.p2align 8\n.type {n},@function\n" + g(n) + "\n"
out += '.section .rodata,"a"\n'
for n, g, grid, blk, lds, vg in kernels:
    out += ".p2align 6\n" + kd(n, vg)
dst = sys.argv[1] if len(sys.argv) > 1 else "parallel_sum__grouped_kv_mqa__dense_activation_squared_relu__prompt.s"
open(dst, "w").write(out)
print("wrote", dst, len(out))
```

```python
class Asm:
    G = 0
    def __init__(self):
        self.lines = []
        self.uid = 0
    def __call__(self, s):
        for ln in s.strip("\n").split("\n"):
            self.lines.append("    " + ln.strip() if ln.strip() and not ln.strip().endswith(":") else ln.strip())
    def c(self, s):
        self.lines.append("    ; " + s)
    def label(self, name):
        self.lines.append(name + ":")
    def newlabel(self, base):
        Asm.G += 1
        return f"L_{base}_{Asm.G}"
    def text(self):
        return "\n".join(self.lines) + "\n"

def vr(a, n=1):
    return f"v{a}" if n == 1 else f"v[{a}:{a+n-1}]"
def sr(a, n=1):
    return f"s{a}" if n == 1 else f"s[{a}:{a+n-1}]"

def srd(A, d, lo, hi, nbytes):
    A(f"s_mov_b32 s{d}, s{lo}")
    A(f"s_mov_b32 s{d+1}, s{hi}")
    A(f"s_mov_b32 s{d+2}, {nbytes}")
    A(f"s_mov_b32 s{d+3}, 0x00020000")

def kd(name, vgpr, sgpr=102, accum=None):
    accum = accum or ((vgpr + 3) // 4 * 4)
    return f""".amdhsa_kernel {name}
  .amdhsa_next_free_vgpr {vgpr}
  .amdhsa_next_free_sgpr {sgpr}
  .amdhsa_accum_offset {accum}
  .amdhsa_group_segment_fixed_size 0
  .amdhsa_kernarg_size 104
  .amdhsa_user_sgpr_count 2
  .amdhsa_user_sgpr_kernarg_segment_ptr 1
  .amdhsa_system_sgpr_workgroup_id_x 1
.end_amdhsa_kernel
"""

STAMPS = False
def stamp(A, i):
    if not STAMPS: return
    A("s_memtime s[98:99]")
    A("s_waitcnt lgkmcnt(0)")
    A(f"s_mov_b32 s{80+i}, s98")
def stamp_dump(A, n, wg=0, DV=2):
    if not STAMPS: return
    l = A.newlabel("nodump")
    A(f"s_cmp_eq_u32 s2, {wg}")
    A(f"s_cbranch_scc0 {l}")
    A("s_load_dwordx2 s[96:97], s[0:1], 88")
    A("s_waitcnt lgkmcnt(0)")
    A("s_mov_b32 s92, s96")
    A("s_mov_b32 s93, s97")
    A("s_mov_b32 s94, 256")
    A("s_mov_b32 s95, 0x00020000")
    A("s_lshl_b32 s98, s38, 5")
    for i in range(n):
        if i == 0:
            A(f"v_mov_b32 v{DV}, s80")
        else:
            A(f"s_sub_u32 s99, s{80+i}, s80")
            A(f"v_mov_b32 v{DV}, s99")
        A(f"v_mov_b32 v{DV+1}, s98")
        A(f"buffer_store_dword v{DV}, v{DV+1}, s[92:95], 0 offen offset:{4*i}")
    A("s_waitcnt vmcnt(0)")
    A.label(l)
```

```python
from asmlib import *

WS_Q = 0
WS_K = 2621440
WS_V = WS_K + 81920
WS_H = WS_V + 81920
WS_W2T = WS_H + 6291456
WS_O = WS_W2T + 2785280
WS_END = WS_O + 2621440
WS_SIZE = WS_END

QSCALE = (20 ** -0.5) * 1.4426950408889634

def magic(d, maxp):
    for sh in range(8, 24):
        m = (1 << sh) // d + 1
        if m * maxp < (1 << 32) and m < (1 << 24) and all((p * m) >> sh == p // d for p in range(maxp + 1)):
            return m, sh
    raise Exception("no magic")

def f2u(x):
    import struct
    return struct.unpack("<I", struct.pack("<f", x))[0]

XN = 0
TOUCH = 128
STG0 = 81920
STG = 20480
R_W1 = 0
R_WQ = 12288
R_KV = 18432

def gen_k1(name):
    A = Asm()
    A.label(name)
    A("s_cmp_ge_u32 s2, 256")
    A(f"s_cbranch_scc1 L_{name}_end")
    A("s_load_dwordx4 s[44:47], s[0:1], 0")
    A("s_load_dwordx4 s[48:51], s[0:1], 16")
    A("s_load_dwordx2 s[52:53], s[0:1], 32")
    A("s_load_dwordx4 s[56:59], s[0:1], 48")
    A("s_load_dwordx2 s[60:61], s[0:1], 64")
    A("s_load_dwordx2 s[62:63], s[0:1], 96")
    A("s_and_b32 s39, s2, 7")
    A("s_lshr_b32 s74, s2, 3")
    A("s_lshr_b32 s36, s39, 1")
    A("s_lshl_b32 s36, s36, 3")
    A("s_lshr_b32 s41, s74, 2")
    A("s_add_u32 s36, s36, s41")
    A("s_and_b32 s75, s39, 1")
    A("s_lshl_b32 s37, s75, 2")
    A("s_and_b32 s41, s74, 3")
    A("s_add_u32 s37, s37, s41")
    A("v_lshrrev_b32 v2, 6, v0")
    A("v_and_b32 v1, 63, v0")
    A("v_readfirstlane_b32 s38, v2")
    A("v_lshrrev_b32 v3, 4, v1")
    A("v_and_b32 v4, 15, v1")
    A("s_lshl_b32 s39, s38, 3")
    A("v_add_u32 v5, s39, v3")
    A("v_mul_u32_u24 v6, 1280, v5")
    A("v_lshl_add_u32 v6, v4, 4, v6")
    A("s_waitcnt lgkmcnt(0)")
    stamp(A, 0)
    srd(A, 8, 44, 45, 2621440)
    srd(A, 24, 62, 63, WS_SIZE)
    XR = 80
    A("s_mul_i32 s39, s36, 81920")
    A("s_add_u32 s40, s39, 5120")
    for p in range(2):
        for i in range(5):
            A(f"buffer_load_dwordx4 {vr(XR + 20*p + 4*i, 4)}, v6, s[8:11], s{39+p} offen offset:{256*i}")
    srd(A, 12, 46, 47, 819200)
    srd(A, 16, 56, 57, 1966080)
    if TOUCH:
        G = TOUCH
        lw1 = A.newlabel("tw1"); lend = A.newlabel("tend")
        A("s_cmp_ge_u32 s38, 6")
        A(f"s_cbranch_scc1 {lend}")
        A("s_cmp_ge_u32 s38, 2")
        A(f"s_cbranch_scc1 {lw1}")
        per = 640 // G; tot = 20 * per; n = (tot + 127) // 128
        mm, ss = magic(per, 128 * n + 128)
        A("s_lshl_b32 s39, s38, 6")
        A("s_mul_i32 s40, s74, 25600")
        A("s_mul_i32 s41, s75, 640")
        A("s_add_u32 s40, s40, s41")
        for i in range(n):
            A(f"v_add_u32 v7, s39, v1")
            if i: A(f"v_add_u32 v7, {128*i}, v7")
            A(f"v_mul_u32_u24 v8, {mm}, v7")
            A(f"v_lshrrev_b32 v8, {ss}, v8")
            A(f"v_mul_u32_u24 v9, {per}, v8")
            A(f"v_sub_u32 v9, v7, v9")
            A(f"v_mul_u32_u24 v8, 1280, v8")
            A(f"v_mul_u32_u24 v9, {G}, v9")
            A(f"v_add_u32 v8, v8, v9")
            A(f"v_cmp_gt_u32 vcc, {tot}, v7")
            A("v_mov_b32 v9, 0x40000000")
            A("s_nop 0")
            A("v_cndmask_b32 v8, v9, v8, vcc")
            A(f"buffer_load_dword v{176+i}, v8, s[12:15], s40 offen")
        A(f"s_branch {lend}")
        A.label(lw1)
        per = 1536 // G; tot = 20 * per; n2 = (tot + 255) // 256
        assert n2 == n
        mm, ss = magic(per, 256 * n2 + 256)
        A("s_sub_u32 s39, s38, 2")
        A("s_lshl_b32 s39, s39, 6")
        A("s_mul_i32 s40, s74, 61440")
        A("s_mul_i32 s41, s75, 1536")
        A("s_add_u32 s40, s40, s41")
        for i in range(n2):
            A(f"v_add_u32 v7, s39, v1")
            if i: A(f"v_add_u32 v7, {256*i}, v7")
            A(f"v_mul_u32_u24 v8, {mm}, v7")
            A(f"v_lshrrev_b32 v8, {ss}, v8")
            A(f"v_mul_u32_u24 v9, {per}, v8")
            A(f"v_sub_u32 v9, v7, v9")
            A(f"v_mul_u32_u24 v8, 3072, v8")
            A(f"v_mul_u32_u24 v9, {G}, v9")
            A(f"v_add_u32 v8, v8, v9")
            A(f"v_cmp_gt_u32 vcc, {tot}, v7")
            A("v_mov_b32 v9, 0x40000000")
            A("s_nop 0")
            A("v_cndmask_b32 v8, v9, v8, vcc")
            A(f"buffer_load_dword v{176+i}, v8, s[16:19], s40 offen")
        A.label(lend)
    A("s_lshl_b32 s39, s38, 8")
    A("s_add_u32 s39, s39, s2")
    A("s_cmp_lt_u32 s39, 544")
    A("s_cselect_b32 s64, 1, 0")
    A("s_lshr_b32 s65, s39, 3")
    A("s_and_b32 s66, s39, 7")
    A("s_cmp_lt_u32 s65, 20")
    A("s_cselect_b32 s28, s52, s60")
    A("s_cselect_b32 s29, s53, s61")
    A("s_mov_b32 s73, 819200")
    A("s_cselect_b32 s30, s73, 1966080")
    A("s_mov_b32 s31, 0x00020000")
    A("s_cselect_b32 s67, 0, 20")
    A("s_cselect_b32 s70, 1, 0")
    A("s_sub_u32 s67, s65, s67")
    A("s_mul_i32 s67, s67, 40960")
    A("s_mul_i32 s68, s66, 160")
    A("s_add_u32 s67, s67, s68")
    lT = f"L_{name}_noT"
    A("s_cmp_eq_u32 s64, 0")
    A(f"s_cbranch_scc1 {lT}")
    m10, s10 = magic(10, 320)
    TSCR = STG0 + 3 * STG
    A(f"s_mul_i32 s69, s38, 5120")
    A(f"s_add_u32 s69, s69, {TSCR}")
    for i in range(5):
        A(f"v_add_u32 v7, {64*i}, v1")
        A(f"v_mul_u32_u24 v8, {m10}, v7")
        A(f"v_lshrrev_b32 v8, {s10}, v8")
        A(f"v_mul_u32_u24 v9, 10, v8")
        A(f"v_sub_u32 v9, v7, v9")
        A(f"v_mul_u32_u24 v8, 1280, v8")
        A(f"v_lshl_add_u32 v8, v9, 4, v8")
        A(f"s_add_u32 m0, s69, {1024*i}")
        A("s_nop 0")
        A(f"buffer_load_dwordx4 v8, s[28:31], s67 offen lds")
    A.label(lT)
    srd(A, 32, 58, 59, 3072)
    A("s_cmp_eq_u32 s37, 0")
    A("s_cselect_b32 s20, s48, s50")
    A("s_cselect_b32 s21, s49, s51")
    A("s_mov_b32 s22, 25600")
    A("s_mov_b32 s23, 0x00020000")
    A("s_cmp_ge_u32 s38, 6")
    A(f"s_cbranch_scc1 L_{name}_roleQ")
    A("s_cmp_ge_u32 s38, 2")
    A(f"s_cbranch_scc1 L_{name}_roleH")
    A("s_cmp_ge_u32 s37, 2")
    A(f"s_cbranch_scc1 L_{name}_roleH")
    role_code(A, name, "K")
    A.label(f"L_{name}_roleH")
    role_code(A, name, "H")
    A.label(f"L_{name}_roleQ")
    role_code(A, name, "Q")
    A.label(f"L_{name}_end")
    A("s_endpgm")
    return A.text()

XR = 80
ACC = 128

def role_code(A, name, role):
    nW = {"K": 4, "H": 2, "Q": 3}[role]
    if role in "HK":
        A("s_mul_i32 s39, s37, 384")
        A("s_lshl_b32 s40, s38, 6")
        A("s_add_u32 s39, s39, s40")
        A("v_lshrrev_b32 v7, 5, v1")
        A("v_lshlrev_b32 v7, 3, v7")
        for q in range(4):
            A(f"buffer_load_dwordx2 {vr(120 + 2*q, 2)}, v7, s[32:35], s39 offen offset:{16*q}")
    if role in "HK":
        m24, s24 = magic(24, 768)
        for i in range(2):
            A("s_lshl_b32 s39, s38, 7")
            A(f"s_add_u32 s39, s39, {64*i}")
            A("v_add_u32 v7, s39, v1")
            A(f"v_mul_u32_u24 v8, {m24}, v7")
            A(f"v_lshrrev_b32 v8, {s24}, v8")
            A("v_mul_u32_u24 v9, 24, v8")
            A("v_sub_u32 v9, v7, v9")
            A("v_bfe_u32 v10, v8, 1, 1")
            A("v_lshlrev_b32 v10, 2, v10")
            A("v_xor_b32 v9, v9, v10")
            A("v_mul_u32_u24 v8, 3072, v8")
            A(f"v_lshl_add_u32 v{12+i}, v9, 4, v8")
        A("s_mul_i32 s71, s37, 384")
        A("s_mov_b32 s40, s71")
        if role == "K":
            A("v_lshlrev_b32 v15, 4, v1")
            A("v_add_u32 v14, 1024, v15")
            A("s_mov_b32 s42, 0")
    else:
        m12, s12 = magic(12, 384)
        for i in range(3):
            A("s_sub_u32 s39, s38, 6")
            A("s_mul_i32 s39, s39, 192")
            A(f"s_add_u32 s39, s39, {64*i}")
            A("v_add_u32 v7, s39, v1")
            A(f"v_mul_u32_u24 v8, {m12}, v7")
            A(f"v_lshrrev_b32 v8, {s12}, v8")
            A("v_mul_u32_u24 v9, 12, v8")
            A("v_sub_u32 v9, v7, v9")
            A("v_mul_u32_u24 v8, 1280, v8")
            A(f"v_lshl_add_u32 v{12+i}, v9, 4, v8")
            A("v_cmp_lt_u32 vcc, 9, v9")
            A("v_mov_b32 v10, 0x40000000")
            A("s_nop 0")
            A(f"v_cndmask_b32 v{12+i}, v{12+i}, v10, vcc")
        A("s_mul_i32 s41, s37, 160")
    def dma(stage):
        base = STG0 + stage * STG
        if role in "HK":
            A("s_lshl_b32 s39, s38, 11")
            for i in range(2):
                A(f"s_add_u32 m0, s39, {base + R_W1 + 1024*i}")
                A("s_nop 0")
                A(f"buffer_load_dwordx4 v{12+i}, s[16:19], s40 offen lds")
            A("s_add_u32 s40, s40, 98304")
            if role == "K":
                A(f"s_mov_b32 m0, {base + R_KV}")
                A("s_nop 0")
                A(f"buffer_load_dwordx4 v15, s[20:23], s42 offen lds")
                A(f"s_mov_b32 m0, {base + R_KV + 1024}")
                A("s_nop 0")
                A(f"buffer_load_dwordx4 v14, s[20:23], s42 offen lds")
                A("s_add_u32 s42, s42, 1280")
        else:
            A("s_sub_u32 s39, s38, 6")
            A("s_mul_i32 s39, s39, 3072")
            for i in range(3):
                A(f"s_add_u32 m0, s39, {base + R_WQ + 1024*i}")
                A("s_nop 0")
                A(f"buffer_load_dwordx4 v{12+i}, s[12:15], s41 offen lds")
            A("s_add_u32 s41, s41, 40960")
    for st in range(3):
        dma(st)
    nb = 4 if role in "HK" else 0
    stamp(A, 1)
    A(f"s_waitcnt vmcnt({nb + 3*nW})")
    stamp(A, 2)
    A("v_mov_b32 v16, 0x3f803f80")
    for p in range(2):
        S, Qs = 18 + 4*p, 20 + 4*p
        A(f"v_mov_b32 v{S}, 0")
        A(f"v_mov_b32 v{S+1}, 0")
        A(f"v_mov_b32 v{Qs}, 0")
        A(f"v_mov_b32 v{Qs+1}, 0")
    for p in range(2):
        S, Qs = 18 + 4*p, 20 + 4*p
        for i in range(20):
            x = XR + 20*p + i
            A(f"v_dot2_f32_bf16 v{S + (i&1)}, v{x}, v16, v{S + (i&1)}")
            A(f"v_dot2_f32_bf16 v{Qs + (i&1)}, v{x}, v{x}, v{Qs + (i&1)}")
    A("s_nop 3")
    for p in range(2):
        S, Qs = 18 + 4*p, 20 + 4*p
        A(f"v_add_f32 v{S}, v{S}, v{S+1}")
        A(f"v_add_f32 v{Qs}, v{Qs}, v{Qs+1}")
    for sh in (8, 4, 2, 1):
        A("s_nop 1")
        for p in range(2):
            S, Qs = 18 + 4*p, 20 + 4*p
            A(f"v_add_f32_dpp v{S}, v{S}, v{S} row_ror:{sh} row_mask:0xf bank_mask:0xf")
            A(f"v_add_f32_dpp v{Qs}, v{Qs}, v{Qs} row_ror:{sh} row_mask:0xf bank_mask:0xf")
    inv = f2u(1.0 / 640)
    A(f"s_mov_b32 s39, {inv}")
    A(f"s_mov_b32 s72, {f2u(1e-5)}")
    for p in range(2):
        S, Qs = 18 + 4*p, 20 + 4*p
        A(f"v_mul_f32 v{S}, s39, v{S}")
        A(f"v_mul_f32 v{Qs}, s39, v{Qs}")
        A(f"v_fma_f32 v{Qs}, -v{S}, v{S}, v{Qs}")
        A(f"v_max_f32 v{Qs}, 0, v{Qs}")
        A(f"v_add_f32 v{Qs}, s72, v{Qs}")
        A(f"v_rsq_f32 v{Qs}, v{Qs}")
        A("s_nop 0")
        A(f"v_mul_f32 v{S}, v{S}, v{Qs}")
        A(f"v_sub_f32 v{S}, 0, v{S}")
    for p in range(2):
        A(f"v_add_u32 v7, {4*p}, v5")
        A("v_and_b32 v8, 15, v7")
        A("v_xor_b32 v8, v8, v4")
        A("v_mul_u32_u24 v7, 1280, v7")
        A(f"v_lshl_add_u32 v{26+p}, v8, 4, v7")
    for p in range(2):
        S, Qs = 18 + 4*p, 20 + 4*p
        for i in range(5):
            for j in range(4):
                x = XR + 20*p + 4*i + j
                A(f"v_lshlrev_b32 v28, 16, v{x}")
                A(f"v_and_b32 v29, 0xffff0000, v{x}")
                A(f"v_fma_f32 v28, v28, v{Qs}, v{S}")
                A(f"v_fma_f32 v29, v29, v{Qs}, v{S}")
                A(f"v_cvt_pk_bf16_f32 v{x}, v28, v29")
            A(f"ds_write_b128 v{26+p}, {vr(XR + 20*p + 4*i, 4)} offset:{256*i}")
    stamp(A, 3)
    if role in "HK":
        lT2 = A.newlabel("noT2")
        A("s_cmp_eq_u32 s64, 0")
        A(f"s_cbranch_scc1 {lT2}")
        A("v_lshrrev_b32 v16, 4, v1")
        A("v_bfe_u32 v17, v1, 2, 2")
        A("v_and_b32 v18, 3, v1")
        A("v_lshlrev_b32 v19, 3, v16")
        A("v_lshrrev_b32 v20, 1, v16")
        A("v_lshlrev_b32 v20, 4, v20")
        A("v_and_b32 v21, 1, v16")
        A("v_lshl_add_u32 v20, v21, 2, v20")
        A("s_cmp_eq_u32 s70, 1")
        A("s_cselect_b64 vcc, -1, 0")
        A("s_movk_i32 s73, 640")
        A("s_cselect_b32 s39, s73, 1280")
        A("v_cndmask_b32 v19, v20, v19, vcc")
        A("v_add_u32 v19, v19, v17")
        A("v_mul_u32_u24 v19, 160, v19")
        A("v_lshl_add_u32 v19, v18, 3, v19")
        A("v_add_u32 v19, s69, v19")
        A("v_add_u32 v20, s39, v19")
        A(f"s_waitcnt vmcnt({nb + 3*nW})")
        for nt in range(5):
            A(f"ds_read_b64_tr_b16 {vr(32 + 4*nt, 2)}, v19 offset:{32*nt}")
            A(f"ds_read_b64_tr_b16 {vr(34 + 4*nt, 2)}, v20 offset:{32*nt}")
        A("s_mul_i32 s39, s66, 68")
        A("s_add_u32 s39, s39, s65")
        A("s_mul_i32 s39, s39, 5120")
        A(f"s_add_u32 s39, s39, {WS_W2T}")
        A("v_lshlrev_b32 v21, 4, v1")
        A("s_waitcnt lgkmcnt(0)")
        for nt in range(5):
            A(f"buffer_store_dwordx4 {vr(32 + 4*nt, 4)}, v21, s[24:27], s39 offen offset:{1024*nt if nt < 4 else 0}" if nt < 4 else
              f"s_add_u32 s39, s39, 4096\n buffer_store_dwordx4 {vr(32 + 4*nt, 4)}, v21, s[24:27], s39 offen")
        A.label(lT2)
    A("v_and_b32 v16, 31, v1")
    A("v_lshrrev_b32 v17, 5, v1")
    A("v_and_b32 v18, 15, v16")
    A("v_xor_b32 v18, v18, v17")
    A("v_mul_u32_u24 v19, 1280, v16")
    A("v_lshl_add_u32 v19, v18, 4, v19")
    if role == "Q":
        A("s_sub_u32 s39, s38, 6")
        A("s_mul_i32 s39, s39, 40960")
        A("v_add_u32 v19, s39, v19")
    A("v_lshrrev_b32 v20, 5, v1")
    A("v_bfe_u32 v21, v1, 2, 2")
    A("v_lshl_add_u32 v20, v20, 3, v21")
    A("v_bfe_u32 v22, v1, 4, 1")
    A("v_and_b32 v23, 3, v1")
    A("v_lshlrev_b32 v23, 3, v23")
    A("v_lshl_add_u32 v23, v22, 5, v23")
    if role in "HK":
        A("v_mul_u32_u24 v10, 384, v20")
        A("v_lshrrev_b32 v24, 1, v21")
        A("v_xor_b32 v24, s38, v24")
        A("v_lshl_add_u32 v10, v24, 6, v10")
        A("v_add_u32 v10, v10, v23")
        A(f"v_add_u32 v10, {STG0 + R_W1}, v10")
    else:
        A("v_mul_u32_u24 v10, 192, v20")
        A("v_add_u32 v10, v10, v23")
        A(f"v_add_u32 v10, {STG0 + R_WQ}, v10")
    A(f"v_add_u32 v11, {2*STG}, v10")
    if role == "K":
        A("v_mul_u32_u24 v30, 40, v20")
        A("v_add_u32 v30, v30, v23")
        A(f"v_add_u32 v30, {STG0 + R_KV}, v30")
        A(f"v_add_u32 v31, {2*STG}, v30")
    for k in range(8):
        A(f"v_xor_b32 v{2+k}, {k << 5}, v19")
    SET = (32, 64)
    if role in "HK":
        A(f"s_waitcnt vmcnt({3*nW})")
        for q in range(4):
            for rt in range(2):
                a = ACC + 16*rt + 4*q
                A(f"v_lshlrev_b32 v{a}, 16, v{120+2*q}")
                A(f"v_and_b32 v{a+1}, 0xffff0000, v{120+2*q}")
                A(f"v_lshlrev_b32 v{a+2}, 16, v{121+2*q}")
                A(f"v_and_b32 v{a+3}, 0xffff0000, v{121+2*q}")
        if role == "K":
            for r in range(16):
                A(f"v_mov_b32 v{ACC+32+r}, 0")
    else:
        for r in range(48):
            A(f"v_mov_b32 v{ACC+r}, 0")

    def reads(chunk_s, st):
        L = []
        b = SET[st]
        wbase = 10 if chunk_s < 2 else 11
        so = (chunk_s % 2) * STG
        for ks in range(2):
            xa = 2 + 2*chunk_s + ks
            if role in "HK":
                for rt in range(2):
                    L.append(f"ds_read_b128 {vr(b + 8*ks + 4*rt, 4)}, v{xa} offset:{40960*rt}")
                rs = 384
                L.append(f"ds_read_b64_tr_b16 {vr(b + 16 + 4*ks, 2)}, v{wbase} offset:{so + 16*ks*rs}")
                L.append(f"ds_read_b64_tr_b16 {vr(b + 18 + 4*ks, 2)}, v{wbase} offset:{so + (16*ks+4)*rs}")
                if role == "K":
                    kb = 30 if chunk_s < 2 else 31
                    L.append(f"ds_read_b64_tr_b16 {vr(b + 24 + 4*ks, 2)}, v{kb} offset:{so + 16*ks*40}")
                    L.append(f"ds_read_b64_tr_b16 {vr(b + 26 + 4*ks, 2)}, v{kb} offset:{so + (16*ks+4)*40}")
            else:
                L.append(f"ds_read_b128 {vr(b + 4*ks, 4)}, v{xa}")
                rs = 192
                for ct in range(3):
                    L.append(f"ds_read_b64_tr_b16 {vr(b + 8 + 12*ks + 4*ct, 2)}, v{wbase} offset:{so + 16*ks*rs + 64*ct}")
                    L.append(f"ds_read_b64_tr_b16 {vr(b + 10 + 12*ks + 4*ct, 2)}, v{wbase} offset:{so + (16*ks+4)*rs + 64*ct}")
        return L
    def mfmas(st):
        L = []
        b = SET[st]
        for ks in range(2):
            if role in "HK":
                for rt in range(2):
                    a = ACC + 16*rt
                    L.append(f"v_mfma_f32_32x32x16_bf16 {vr(a,16)}, {vr(b + 16 + 4*ks, 4)}, {vr(b + 8*ks + 4*rt, 4)}, {vr(a,16)}")
                if role == "K":
                    a = ACC + 32
                    L.append(("KV", ks))
            else:
                for ct in range(3):
                    a = ACC + 16*ct
                    L.append(f"v_mfma_f32_32x32x16_bf16 {vr(a,16)}, {vr(b + 8 + 12*ks + 4*ct, 4)}, {vr(b + 4*ks, 4)}, {vr(a,16)}")
        return L
    if role == "K":
        pass
    stamp(A, 4)
    A("s_waitcnt lgkmcnt(0)")
    A(f"s_waitcnt vmcnt({2*nW})")
    A("s_barrier")
    stamp(A, 5)
    dma(3)
    for ln in reads(0, 0):
        A(ln)
    A("s_mov_b32 s43, 5")
    lp = A.newlabel("k1loop")
    A.label(lp)
    for s in range(4):
        st = s % 2
        A(f"s_waitcnt vmcnt({2*nW}) lgkmcnt(0)")
        A("s_barrier")
        ms = mfmas(st)
        if s == 3:
            pre = [f"v_add_u32 v{2+k}, 256, v{2+k}" for k in range(8)]
        else:
            pre = []
        rd = reads((s + 1) % 4, 1 - st)
        def emit_m(m):
            if isinstance(m, tuple):
                ks = m[1]
                b = SET[st]
                a = ACC + 32
                la = A.newlabel("kv")
                lb = A.newlabel("kve")
                A("s_cmp_eq_u32 s38, 0")
                A(f"s_cbranch_scc0 {la}")
                A(f"v_mfma_f32_32x32x16_bf16 {vr(a,16)}, {vr(b + 24 + 4*ks, 4)}, {vr(b + 8*ks, 4)}, {vr(a,16)}")
                A(f"s_branch {lb}")
                A.label(la)
                A(f"v_mfma_f32_32x32x16_bf16 {vr(a,16)}, {vr(b + 24 + 4*ks, 4)}, {vr(b + 8*ks + 4, 4)}, {vr(a,16)}")
                A.label(lb)
            else:
                A(m)
        emit_m(ms[0])
        dma(s)
        for ln in pre:
            A(ln)
        rest = ms[1:]
        per = (len(rd) + len(rest) - 1) // len(rest)
        ri = 0
        for m in rest:
            for ln in rd[ri:ri+per]:
                A(ln)
            ri += per
            emit_m(m)
        for ln in rd[ri:]:
            A(ln)
    A("s_sub_u32 s43, s43, 1")
    A("s_cmp_lg_u32 s43, 0")
    A(f"s_cbranch_scc1 {lp}")
    A("s_nop 15")
    A("s_nop 7")
    stamp(A, 6)
    A("v_and_b32 v16, 31, v1")
    A("v_lshrrev_b32 v17, 5, v1")
    if role in "HK":
        A("v_lshrrev_b32 v18, 4, v16")
        A("v_mul_u32_u24 v18, 49152, v18")
        A("v_and_b32 v19, 15, v16")
        A("v_lshl_add_u32 v19, v17, 4, v19")
        A("v_lshl_add_u32 v18, v19, 4, v18")
        for rt in range(2):
            A("s_lshl_b32 s39, s36, 2")
            A(f"s_add_u32 s39, s39, {2*rt}")
            A("s_mul_i32 s39, s39, 48")
            A("s_mul_i32 s40, s37, 6")
            A("s_add_u32 s39, s39, s40")
            A("s_add_u32 s39, s39, s38")
            A("s_lshl_b32 s39, s39, 10")
            A(f"s_add_u32 s39, s39, {WS_H}")
            a = ACC + 16*rt
            for r in range(16):
                A(f"v_max_f32 v{a+r}, 0, v{a+r}")
            for r in range(16):
                A(f"v_mul_f32 v{a+r}, v{a+r}, v{a+r}")
            for u in range(2):
                for j in range(4):
                    A(f"v_cvt_pk_bf16_f32 v{32 + 8*rt + 4*u + j}, v{a + 8*u + 2*j}, v{a + 8*u + 2*j + 1}")
                A(f"buffer_store_dwordx4 {vr(32 + 8*rt + 4*u, 4)}, v18, s[24:27], s39 offen offset:{512*u}")
        if role == "K":
            a = ACC + 32
            for j in range(6):
                A(f"v_cvt_pk_bf16_f32 v{48 + j}, v{a + 2*j}, v{a + 2*j + 1}")
            A("s_lshl_b32 s39, s36, 1")
            A("s_add_u32 s39, s39, s38")
            A("s_mul_i32 s39, s39, 1280")
            lv = A.newlabel("isV"); le = A.newlabel("kvdone")
            A("s_cmp_eq_u32 s37, 0")
            A(f"s_cbranch_scc0 {lv}")
            A(f"s_add_u32 s39, s39, {WS_K}")
            A("v_lshlrev_b32 v20, 4, v16")
            A("v_lshl_add_u32 v20, v17, 3, v20")
            A(f"buffer_store_dwordx2 {vr(48,2)}, v20, s[24:27], s39 offen")
            A(f"buffer_store_dwordx2 {vr(50,2)}, v20, s[24:27], s39 offen offset:512")
            A("v_lshlrev_b32 v21, 3, v16")
            A("v_mov_b32 v22, 0x40000000")
            A("v_cmp_eq_u32 vcc, 0, v17")
            A("s_nop 1")
            A("v_cndmask_b32 v21, v22, v21, vcc")
            A(f"buffer_store_dwordx2 {vr(52,2)}, v21, s[24:27], s39 offen offset:1024")
            A(f"s_branch {le}")
            A.label(lv)
            A(f"s_add_u32 s39, s39, {WS_V}")
            A("v_lshrrev_b32 v20, 4, v16")
            A("v_mul_u32_u24 v20, 640, v20")
            A("v_bfe_u32 v21, v16, 2, 1")
            A("v_mul_u32_u24 v21, 320, v21")
            A("v_add_u32 v20, v20, v21")
            A("v_bfe_u32 v21, v16, 3, 1")
            A("v_lshl_add_u32 v20, v21, 3, v20")
            A("v_and_b32 v21, 3, v16")
            A("v_lshl_add_u32 v20, v21, 1, v20")
            A("v_lshl_add_u32 v20, v17, 6, v20")
            A("v_mov_b32 v22, 0x40000000")
            A("v_cmp_eq_u32 vcc, 0, v17")
            A("s_nop 1")
            A("v_cndmask_b32 v21, v22, v20, vcc")
            for r in range(12):
                off = (r % 4) * 16 + (r // 4) * 128
                va = 20 if r < 8 else 21
                op = "buffer_store_short" if r % 2 == 0 else "buffer_store_short_d16_hi"
                A(f"{op} v{48 + r//2}, v{va}, s[24:27], s39 offen offset:{off}")
            A.label(le)
    else:
        A(f"s_mov_b32 s40, {f2u(QSCALE)}")
        A("v_mul_u32_u24 v18, 1280, v16")
        A("v_lshl_add_u32 v18, v17, 3, v18")
        A("s_lshl_b32 s39, s36, 1")
        A("s_add_u32 s39, s39, s38")
        A("s_sub_u32 s39, s39, 6")
        A("s_mul_i32 s39, s39, 40960")
        A("s_mul_i32 s41, s37, 160")
        A("s_add_u32 s39, s39, s41")
        if WS_Q:
            A(f"s_add_u32 s39, s39, {WS_Q}")
        for ct in range(3):
            a = ACC + 16*ct
            nq = 4 if ct < 2 else 2
            for r in range(4*nq):
                A(f"v_mul_f32 v{a+r}, s40, v{a+r}")
            for q in range(nq):
                A(f"v_cvt_pk_bf16_f32 v{32 + 8*ct + 2*q}, v{a + 4*q}, v{a + 4*q + 1}")
                A(f"v_cvt_pk_bf16_f32 v{33 + 8*ct + 2*q}, v{a + 4*q + 2}, v{a + 4*q + 3}")
                A(f"buffer_store_dwordx2 {vr(32 + 8*ct + 2*q, 2)}, v18, s[24:27], s39 offen offset:{64*ct + 16*q}")
    A("s_waitcnt vmcnt(0)")
    stamp(A, 7)
    stamp_dump(A, 8)
    A("s_endpgm")
```

```python
from asmlib import *
import asmlib
from k1 import WS_Q, WS_K, WS_V, WS_H, WS_W2T, WS_O, WS_SIZE, f2u
from k3 import ids

SA, SB, PA, PB, OA, OB = 16, 32, 48, 56, 64, 80
Q1A, Q2A, Q1B, Q2B, K1, K2, V1, V2 = 96, 100, 104, 108, 112, 116, 120, 124
OFF = 88.0
VMASK = 0x000FFFFF

def qk(A, S, Q1, Q2):
    return [f"v_mfma_f32_32x32x16_bf16 {vr(S,16)}, {vr(K1,4)}, {vr(Q1,4)}, 0",
            f"v_mfma_f32_32x32x16_bf16 {vr(S,16)}, {vr(K2,4)}, {vr(Q2,4)}, {vr(S,16)}"]
def pv(O, P):
    return [f"v_mfma_f32_32x32x16_bf16 {vr(O,16)}, {vr(V1,4)}, {vr(P,4)}, {vr(O,16)}",
            f"v_mfma_f32_32x32x16_bf16 {vr(O,16)}, {vr(V2,4)}, {vr(P+4,4)}, {vr(O,16)}"]

def readK(A, off):
    A(f"ds_read_b128 {vr(K1,4)}, v2 offset:{off}")
    A(f"ds_read_b64 {vr(K2,2)}, v3 offset:{off}")
def readV(A, off):
    A("s_mov_b64 exec, s[60:61]")
    A(f"ds_read_b128 {vr(V1,4)}, v4 offset:{off}")
    A(f"ds_read_b128 {vr(V2,4)}, v4 offset:{off + 640}")
    A("s_mov_b64 exec, -1")

def half(A, S, P, ms, hooks):
    e = [f"v_exp_f32 v{S+i}, v{S+i}" for i in range(16)]
    c = [f"v_cvt_pk_bf16_f32 v{P+i}, v{S+2*i}, v{S+2*i+1}" for i in range(8)]
    def M(i):
        if ("pre", i) in hooks: hooks[("pre", i)]()
        A(ms[i])
        if i in hooks: hooks[i]()
    M(0)
    for x in e[0:4]: A(x)
    M(1)
    for x in e[4:8]: A(x)
    A(c[0]); A(c[1])
    M(2)
    for x in e[8:12]: A(x)
    A(c[2]); A(c[3])
    M(3)
    for x in e[12:16]: A(x)
    for x in c[4:8]: A(x)

def setm(A, Q2, M):
    A(f"v_sub_f32 v7, 0, v{M}")
    A(f"v_and_b32 v8, 0xffff0000, v7")
    A(f"v_sub_f32 v7, v7, v8")
    A(f"v_and_b32 v9, 0xffff0000, v7")
    A(f"v_sub_f32 v7, v7, v9")
    A(f"v_lshrrev_b32 v8, 16, v8")
    A(f"v_or_b32 v8, v8, v9")
    A(f"v_lshrrev_b32 v7, 16, v7")
    A(f"v_cndmask_b32 v{Q2+2}, 0, v8, s[62:63]")
    A(f"v_cndmask_b32 v{Q2+3}, 0, v7, s[62:63]")

def rowmax16(A, S, dst, first):
    if first:
        A(f"v_max3_f32 v{dst}, v{S}, v{S+1}, v{S+2}")
        i = 3
    else:
        i = 0
    while i + 1 < 16:
        A(f"v_max3_f32 v{dst}, v{dst}, v{S+i}, v{S+i+1}")
        i += 2
    if i < 16:
        A(f"v_max_f32 v{dst}, v{dst}, v{S+i}")

def crossmax(A, M):
    A(f"v_mov_b32 v7, v{M}")
    A("s_nop 1")
    A(f"v_permlane32_swap_b32 v7, v{M}")
    A("s_nop 1")
    A(f"v_max_f32 v{M}, v{M}, v7")

def gen_k2(name):
    A = Asm()
    A.label(name)
    A("s_cmp_ge_u32 s2, 256")
    A(f"s_cbranch_scc1 L_{name}_end")
    A("s_load_dwordx2 s[62:63], s[0:1], 96")
    ids(A)
    A("v_lshlrev_b32 v2, 4, v1")
    A("s_waitcnt lgkmcnt(0)")
    stamp(A, 0)
    srd(A, 24, 62, 63, WS_SIZE)
    A("s_and_b32 s42, s38, 3")
    A("s_lshl_b32 s43, s37, 2")
    A("s_add_u32 s42, s42, s43")
    A("s_lshr_b32 s43, s38, 2")
    A("v_and_b32 v7, 31, v1")
    A("v_lshrrev_b32 v8, 5, v1")
    A("v_mul_u32_u24 v9, 1280, v7")
    A("v_lshl_add_u32 v10, v8, 4, v9")
    A("v_cmp_eq_u32 s[62:63], 0, v8")
    A("v_add_u32 v9, 32, v9")
    A("v_mov_b32 v11, 0x40000000")
    A("s_mul_i32 s44, s36, 81920")
    A("s_mul_i32 s45, s42, 40")
    A("s_add_u32 s44, s44, s45")
    if WS_Q: A(f"s_add_u32 s44, s44, {WS_Q}")
    A("s_add_u32 s45, s44, 40960")
    A("v_cndmask_b32 v9, v11, v9, s[62:63]")
    A(f"buffer_load_dwordx4 {vr(Q1A,4)}, v10, s[24:27], s44 offen")
    A(f"buffer_load_dwordx2 {vr(Q2A,2)}, v9, s[24:27], s44 offen")
    A(f"buffer_load_dwordx4 {vr(Q1B,4)}, v10, s[24:27], s45 offen")
    A(f"buffer_load_dwordx2 {vr(Q2B,2)}, v9, s[24:27], s45 offen")
    A("s_lshl_b32 s46, s38, 10")
    A(f"s_add_u32 s47, s46, {WS_K}")
    for i in range(20):
        A(f"s_add_u32 m0, s46, {8192*i}")
        A(f"s_add_u32 s48, s47, {8192*i}")
        A(f"buffer_load_dwordx4 v2, s[24:27], s48 offen lds")
    A("s_mul_i32 s49, s43, 40960")
    A("v_add_u32 v2, s49, v2")
    A("v_lshlrev_b32 v3, 3, v7")
    A("v_add_u32 v3, s49, v3")
    A("v_add_u32 v3, 1024, v3")
    A("v_mul_u32_u24 v4, 320, v8")
    A("v_lshl_add_u32 v4, v7, 4, v4")
    A("v_add_u32 v4, s49, v4")
    A("v_add_u32 v4, 81920, v4")
    A(f"s_mov_b32 s60, {VMASK}")
    A(f"s_mov_b32 s61, {VMASK}")
    A(f"v_mov_b32 v{K2+2}, 0x3f803f80")
    A(f"v_mov_b32 v{K2+3}, 0x00003f80")
    A("v_cmp_eq_u32 vcc, 20, v7")
    A("v_mov_b32 v12, 0x3f803f80")
    A("s_nop 0")
    for r in range(8):
        A(f"v_cndmask_b32 v{V1+r}, 0, v12, vcc")
    A("s_mov_b32 s50, 0")
    stamp(A, 1)
    A("s_waitcnt vmcnt(0)")
    stamp(A, 2)
    A("s_barrier")
    stamp(A, 3)
    for Q2 in (Q2A, Q2B):
        A(f"v_mov_b32 v{Q2+2}, 0")
        A(f"v_mov_b32 v{Q2+3}, 0")
    for tile in range(2):
        readK(A, 1280*tile)
        A("s_waitcnt lgkmcnt(0)")
        for m in qk(A, SA, Q1A, Q2A): A(m)
        for m in qk(A, SB, Q1B, Q2B): A(m)
        A("s_nop 15")
        A("s_nop 3")
        rowmax16(A, SA, 5, tile == 0)
        rowmax16(A, SB, 6, tile == 0)
    lmain = A.newlabel("main")
    for M in (5, 6):
        crossmax(A, M)
        A(f"v_add_f32 v{M}, {f2u(OFF)}, v{M}")
    A.label(lmain)
    setm(A, Q2A, 5)
    setm(A, Q2B, 6)
    for r in range(16):
        A(f"v_mov_b32 v{OA+r}, 0")
        A(f"v_mov_b32 v{OB+r}, 0")
    for r in range(8):
        A(f"v_mov_b32 v{PB+r}, 0")
    A("v_mov_b32 v13, v2")
    A("v_mov_b32 v14, v3")
    A("v_mov_b32 v15, v4")
    readK(A, 0)
    readV(A, 0)
    A("s_waitcnt lgkmcnt(0)")
    for m in qk(A, SA, Q1A, Q2A): A(m)
    A("s_nop 15")
    stamp(A, 4)
    A("s_mov_b32 s51, 8")
    lp = A.newlabel("loop")
    A.label(lp)
    U = 4
    for t in range(U):
        o = 1280*t
        ms = qk(A, SB, Q1B, Q2B) + pv(OB, PB)
        hooks = {1: (lambda o=o: readK(A, o + 1280)), 3: (lambda o=o: readV(A, o))}
        half(A, SA, PA, ms, hooks)
        ms = qk(A, SA, Q1A, Q2A) + pv(OA, PA)
        hooks = {("pre", 0): (lambda: A("s_waitcnt lgkmcnt(2)")), ("pre", 2): (lambda: A("s_waitcnt lgkmcnt(0)"))}
        half(A, SB, PB, ms, hooks)
    for r in (2, 3, 4):
        A(f"v_add_u32 v{r}, {1280*U}, v{r}")
    A("s_sub_u32 s51, s51, 1")
    A("s_cmp_lg_u32 s51, 0")
    A(f"s_cbranch_scc1 {lp}")
    A("s_nop 1")
    stamp(A, 5)
    for m in pv(OB, PB): A(m)
    A("v_mov_b32 v2, v13")
    A("v_mov_b32 v3, v14")
    A("v_mov_b32 v4, v15")
    A("s_nop 15")
    A("s_nop 3")
    lok = A.newlabel("ok")
    A("v_mov_b32 v7, 0")
    for O in (OA, OB):
        for r in range(12):
            A(f"v_fma_f32 v7, v{O+r}, 0, v7")
    A("v_cmp_u_f32 vcc, v7, v7")
    A("s_cmp_lg_u32 s50, 0")
    A(f"s_cbranch_scc1 {lok}")
    A("s_nop 3")
    A("s_cmp_eq_u64 vcc, 0")
    A(f"s_cbranch_scc1 {lok}")
    A("s_mov_b32 s50, 1")
    for Q2 in (Q2A, Q2B):
        A(f"v_mov_b32 v{Q2+2}, 0")
        A(f"v_mov_b32 v{Q2+3}, 0")
    A("v_mov_b32 v5, 0xff800000")
    A("v_mov_b32 v6, 0xff800000")
    A("s_mov_b32 s51, 32")
    lf = A.newlabel("fb")
    A.label(lf)
    readK(A, 0)
    A("s_waitcnt lgkmcnt(0)")
    for m in qk(A, SA, Q1A, Q2A): A(m)
    for m in qk(A, SB, Q1B, Q2B): A(m)
    A("s_nop 15")
    A("s_nop 3")
    rowmax16(A, SA, 5, False)
    rowmax16(A, SB, 6, False)
    A("v_add_u32 v2, 1280, v2")
    A("v_add_u32 v3, 1280, v3")
    A("s_sub_u32 s51, s51, 1")
    A("s_cmp_lg_u32 s51, 0")
    A(f"s_cbranch_scc1 {lf}")
    A("v_mov_b32 v2, v13")
    A("v_mov_b32 v3, v14")
    crossmax(A, 5)
    crossmax(A, 6)
    A(f"s_branch {lmain}")
    A.label(lok)
    stamp(A, 6)
    A("s_barrier")
    A("v_lshlrev_b32 v7, 4, v1")
    A("s_lshl_b32 s52, s38, 12")
    A("v_add_u32 v7, s52, v7")
    A("v_lshlrev_b32 v8, 2, v1")
    A("v_add_u32 v8, s52, v8")
    lb = A.newlabel("sendA"); lc = A.newlabel("sent")
    A("s_cmp_eq_u32 s43, 0")
    A(f"s_cbranch_scc0 {lb}")
    for i in range(3):
        A(f"ds_write_b128 v7, {vr(OB + 4*i, 4)} offset:{1024*i}")
    A("ds_write_b32 v8, v6 offset:3072")
    A(f"s_branch {lc}")
    A.label(lb)
    for i in range(3):
        A(f"ds_write_b128 v7, {vr(OA + 4*i, 4)} offset:{1024*i}")
    A("ds_write_b32 v8, v5 offset:3072")
    for r in range(12):
        A(f"v_mov_b32 v{OA+r}, v{OB+r}")
    A("v_mov_b32 v5, v6")
    A.label(lc)
    A("s_waitcnt lgkmcnt(0)")
    A("s_barrier")
    A("s_xor_b32 s52, s38, 4")
    A("s_lshl_b32 s52, s52, 12")
    A("v_lshlrev_b32 v7, 4, v1")
    A("v_add_u32 v7, s52, v7")
    A("v_lshlrev_b32 v8, 2, v1")
    A("v_add_u32 v8, s52, v8")
    for i in range(3):
        A(f"ds_read_b128 {vr(OB + 4*i, 4)}, v7 offset:{1024*i}")
    A("ds_read_b32 v6, v8 offset:3072")
    A("s_waitcnt lgkmcnt(0)")
    A("v_max_f32 v9, v5, v6")
    A("v_sub_f32 v5, v5, v9")
    A("v_sub_f32 v6, v6, v9")
    A("v_exp_f32 v5, v5")
    A("v_exp_f32 v6, v6")
    A("s_nop 0")
    for r in range(12):
        A(f"v_mul_f32 v{OA+r}, v{OA+r}, v5")
    for r in range(12):
        A(f"v_fma_f32 v{OA+r}, v{OB+r}, v6, v{OA+r}")
    A(f"v_mov_b32 v9, v{OA+8}")
    A(f"v_mov_b32 v10, v{OA+8}")
    A("s_nop 1")
    A("v_permlane32_swap_b32 v9, v10")
    A("s_nop 1")
    A("v_rcp_f32 v10, v10")
    A("s_nop 0")
    for r in range(12):
        A(f"v_mul_f32 v{OA+r}, v{OA+r}, v10")
    for j in range(6):
        A(f"v_cvt_pk_bf16_f32 v{SA+j}, v{OA+2*j}, v{OA+2*j+1}")
    A("v_and_b32 v7, 31, v1")
    A("v_lshrrev_b32 v8, 4, v7")
    A("v_mul_u32_u24 v8, 20480, v8")
    A("v_and_b32 v9, 15, v7")
    A("v_lshl_add_u32 v8, v9, 4, v8")
    A("s_lshl_b32 s52, s36, 2")
    A("s_lshl_b32 s53, s43, 1")
    A("s_add_u32 s52, s52, s53")
    A("s_mul_i32 s52, s52, 20480")
    A(f"s_add_u32 s52, s52, {WS_O}")
    A("s_mul_i32 s53, s42, 20")
    for q in range(3):
        for h in range(2):
            d = 54 + h
            A(f"s_add_u32 s56, s53, {8*q + 4*h}")
            A(f"s_lshr_b32 s{d}, s56, 5")
            A(f"s_lshl_b32 s{d}, s{d}, 10")
            A(f"s_bfe_u32 s57, s56, 0x20003")
            A(f"s_lshl_b32 s57, s57, 8")
            A(f"s_add_u32 s{d}, s{d}, s57")
            A(f"s_and_b32 s57, s56, 7")
            A(f"s_lshl_b32 s57, s57, 1")
            A(f"s_add_u32 s{d}, s{d}, s57")
        if q == 2:
            A("s_mov_b32 s55, 0x40000000")
        A("v_mov_b32 v9, s55")
        A("v_mov_b32 v10, s54")
        A("v_cndmask_b32 v9, v9, v10, s[62:63]")
        A("v_add_u32 v9, v9, v8")
        A(f"buffer_store_dwordx2 {vr(SA + 2*q, 2)}, v9, s[24:27], s52 offen")
    stamp(A, 7)
    stamp_dump(A, 8)
    A.label(f"L_{name}_end")
    A("s_endpgm")
    return A.text()
```

```python
from asmlib import *
from k1 import WS_Q, WS_K, WS_V, WS_H, WS_W2T, WS_O, WS_SIZE

def ids(A):
    A("s_and_b32 s39, s2, 7")
    A("s_lshr_b32 s74, s2, 3")
    A("s_lshr_b32 s36, s39, 1")
    A("s_lshl_b32 s36, s36, 3")
    A("s_lshr_b32 s41, s74, 2")
    A("s_add_u32 s36, s36, s41")
    A("s_and_b32 s75, s39, 1")
    A("s_lshl_b32 s37, s75, 2")
    A("s_and_b32 s41, s74, 3")
    A("s_add_u32 s37, s37, s41")
    A("v_lshrrev_b32 v2, 6, v0")
    A("v_and_b32 v1, 63, v0")
    A("v_readfirstlane_b32 s38, v2")

def gen_k3(name):
    A = Asm()
    A.label(name)
    A("s_cmp_ge_u32 s2, 256")
    A(f"s_cbranch_scc1 L_{name}_end")
    A("s_load_dwordx2 s[44:45], s[0:1], 0")
    A("s_load_dwordx4 s[48:51], s[0:1], 72")
    A("s_load_dwordx2 s[62:63], s[0:1], 96")
    ids(A)
    A("v_lshlrev_b32 v2, 4, v1")
    A("s_waitcnt lgkmcnt(0)")
    stamp(A, 0)
    srd(A, 8, 44, 45, 2621440)
    srd(A, 12, 48, 49, 1280)
    srd(A, 16, 50, 51, 2621440)
    srd(A, 24, 62, 63, WS_SIZE)
    ACC = 0 + 8
    NST = 4
    BUF = [ACC + 80 + 36*i for i in range(NST)]
    XB = 232
    A("v_and_b32 v3, 15, v1")
    A("v_lshrrev_b32 v4, 4, v1")
    A("v_mul_u32_u24 v5, 1280, v3")
    A("v_lshl_add_u32 v5, v4, 3, v5")
    A("v_lshlrev_b32 v6, 3, v4")
    A("s_lshl_b32 s39, s36, 2")
    A("s_add_u32 s39, s39, s38")
    A("s_mul_i32 s39, s39, 20480")
    A("s_mul_i32 s40, s37, 160")
    A("s_add_u32 s52, s39, s40")
    A("s_mov_b32 s53, s40")
    for nt in range(5):
        A(f"buffer_load_dwordx2 {vr(XB + 2*nt, 2)}, v5, s[8:11], s52 offen offset:{32*nt}")
    for nt in range(5):
        A(f"buffer_load_dwordx2 {vr(XB + 10 + 2*nt, 2)}, v6, s[12:15], s53 offen offset:{32*nt}")
    A("s_mul_i32 s54, s37, 68")
    A("s_add_u32 s54, s54, s38")
    A("s_mul_i32 s54, s54, 5120")
    A(f"s_add_u32 s54, s54, {WS_W2T}")
    for j in range(4):
        A("s_lshl_b32 s39, s36, 2")
        A(f"s_add_u32 s39, s39, {j}")
        A("s_mul_i32 s39, s39, 20")
        A("s_add_u32 s39, s39, s38")
        A("s_lshl_b32 s39, s39, 10")
        A(f"s_add_u32 s{56+j}, s39, {WS_O}")
    def loads(i):
        b = BUF[i % NST]
        if i == 5:
            for j in range(4):
                A("s_lshl_b32 s39, s36, 2")
                A(f"s_add_u32 s39, s39, {j}")
                A("s_mul_i32 s39, s39, 48")
                A("s_add_u32 s39, s39, s38")
                A("s_lshl_b32 s39, s39, 10")
                A(f"s_add_u32 s{56+j}, s39, {WS_H}")
        A("s_add_u32 s55, s54, 4096")
        for nt in range(4):
            A(f"buffer_load_dwordx4 {vr(b + 4*nt, 4)}, v2, s[24:27], s54 offen offset:{1024*nt}")
        A(f"buffer_load_dwordx4 {vr(b + 16, 4)}, v2, s[24:27], s55 offen")
        for j in range(4):
            A(f"buffer_load_dwordx4 {vr(b + 20 + 4*j, 4)}, v2, s[24:27], s{56+j} offen")
        A(f"s_add_u32 s54, s54, {4*5120}")
        for j in range(4):
            A(f"s_add_u32 s{56+j}, s{56+j}, 4096")
    N = 17
    for i in range(3):
        loads(i)
    for r in range(80):
        A(f"v_mov_b32 v{ACC + r}, 0")
    stamp(A, 1)
    for i in range(N):
        if i == 1: stamp(A, 2)
        if i == 8: stamp(A, 3)
        if i + 3 < N:
            loads(i + 3)
        later = min(N - 1, i + 3) - i
        A(f"s_waitcnt vmcnt({9*later})")
        b = BUF[i % NST]
        for j in range(4):
            for nt in range(5):
                a = ACC + 20*j + 4*nt
                A(f"v_mfma_f32_16x16x32_bf16 {vr(a,4)}, {vr(b + 4*nt, 4)}, {vr(b + 20 + 4*j, 4)}, {vr(a,4)}")
    A("s_nop 7")
    A("s_nop 3")
    stamp(A, 4)
    for dj in range(1, 4):
        A(f"s_add_u32 s39, s38, {dj}")
        A("s_and_b32 s39, s39, 3")
        A("s_mul_i32 s40, s39, 15360")
        A(f"s_add_u32 s40, s40, {(3 - dj) * 5120}")
        A("v_add_u32 v7, s40, v2")
        done = A.newlabel("wdone")
        for j in range(4):
            nxt = A.newlabel("wn")
            A(f"s_cmp_eq_u32 s39, {j}")
            A(f"s_cbranch_scc0 {nxt}")
            for nt in range(5):
                A(f"ds_write_b128 v7, {vr(ACC + 20*j + 4*nt, 4)} offset:{1024*nt}")
            A(f"s_branch {done}")
            A.label(nxt)
        A.label(done)
    done = A.newlabel("mdone")
    for j in range(4):
        nxt = A.newlabel("mn")
        A(f"s_cmp_eq_u32 s38, {j}")
        A(f"s_cbranch_scc0 {nxt}")
        for r in range(20):
            A(f"v_mov_b32 v{88 + r}, v{ACC + 20*j + r}")
        A(f"s_branch {done}")
        A.label(nxt)
    A.label(done)
    A("s_waitcnt lgkmcnt(0)")
    A("s_barrier")
    stamp(A, 5)
    A("s_mul_i32 s40, s38, 15360")
    A("v_add_u32 v7, s40, v2")
    for idx in range(3):
        for nt in range(5):
            A(f"ds_read_b128 {vr(112 + 20*idx + 4*nt, 4)}, v7 offset:{5120*idx + 1024*nt}")
    A("s_waitcnt lgkmcnt(0)")
    for r in range(20):
        A(f"v_add_f32 v{88+r}, v{88+r}, v{112+r}")
        A(f"v_add_f32 v{132+r}, v{132+r}, v{152+r}")
    for r in range(20):
        A(f"v_add_f32 v{88+r}, v{88+r}, v{132+r}")
    for nt in range(5):
        for hw in range(2):
            xr = XB + 2*nt + hw
            br = XB + 10 + 2*nt + hw
            a = 88 + 4*nt + 2*hw
            A(f"v_lshlrev_b32 v8, 16, v{xr}")
            A(f"v_and_b32 v9, 0xffff0000, v{xr}")
            A(f"v_lshlrev_b32 v10, 16, v{br}")
            A(f"v_and_b32 v11, 0xffff0000, v{br}")
            A(f"v_add_f32 v{a}, v{a}, v8")
            A(f"v_add_f32 v{a+1}, v{a+1}, v9")
            A(f"v_add_f32 v{a}, v{a}, v10")
            A(f"v_add_f32 v{a+1}, v{a+1}, v11")
            A(f"v_cvt_pk_bf16_f32 v{112 + 2*nt + hw}, v{a}, v{a+1}")
        A(f"buffer_store_dwordx2 {vr(112 + 2*nt, 2)}, v5, s[16:19], s52 offen offset:{32*nt}")
    stamp(A, 6)
    A("s_waitcnt vmcnt(0)")
    stamp(A, 7)
    stamp_dump(A, 8)
    A.label(f"L_{name}_end")
    A("s_endpgm")
    return A.text()
```

```python
import sys
import asmlib
asmlib.STAMPS = (len(sys.argv) > 2 and sys.argv[2] == 'stamp')
from asmlib import *
import k1
from k1 import gen_k1, WS_SIZE
import os
if 'TOUCH' in os.environ: k1.TOUCH = int(os.environ['TOUCH'])
from k2 import gen_k2
from k3 import gen_k3
ref = open("parallel_sum__grouped_kv_mqa__dense_activation_squared_relu__prompt.s.ref").read()
hdr = []
for ln in ref.split("\n"):
    if ln.startswith("; Override") or ln.startswith("; grid=") or "@launch" in ln or not ln.startswith(";"):
        if not ln.startswith(";"): break
        continue
    hdr.append(ln)
kernels = [("k1_kernel", gen_k1, 256, 512, 163840, 180), ("k2_kernel", gen_k2, 256, 512, 163840, 128), ("k3_kernel", gen_k3, 256, 256, 61440, 252)]
out = "\n".join(hdr) + "\n"
for n, g, grid, blk, lds, vg in kernels:
    out += f"; @launch kernel={n} grid=({grid},1,1) block=({blk},1,1) lds={lds}\n"
out += '.amdgcn_target "amdgcn-amd-amdhsa--gfx950"\n.text\n'
for n, g, grid, blk, lds, vg in kernels:
    out += f".globl {n}\n.p2align 8\n.type {n},@function\n" + g(n) + "\n"
out += '.section .rodata,"a"\n'
for n, g, grid, blk, lds, vg in kernels:
    out += ".p2align 6\n" + kd(n, vg)
dst = sys.argv[1] if len(sys.argv) > 1 else "parallel_sum__grouped_kv_mqa__dense_activation_squared_relu__prompt.s"
open(dst, "w").write(out)
print("wrote", dst, len(out))
```

```python
class Asm:
    G = 0
    def __init__(self):
        self.lines = []
        self.uid = 0
    def __call__(self, s):
        for ln in s.strip("\n").split("\n"):
            self.lines.append("    " + ln.strip() if ln.strip() and not ln.strip().endswith(":") else ln.strip())
    def c(self, s):
        self.lines.append("    ; " + s)
    def label(self, name):
        self.lines.append(name + ":")
    def newlabel(self, base):
        Asm.G += 1
        return f"L_{base}_{Asm.G}"
    def text(self):
        return "\n".join(self.lines) + "\n"

def vr(a, n=1):
    return f"v{a}" if n == 1 else f"v[{a}:{a+n-1}]"
def sr(a, n=1):
    return f"s{a}" if n == 1 else f"s[{a}:{a+n-1}]"

def srd(A, d, lo, hi, nbytes):
    A(f"s_mov_b32 s{d}, s{lo}")
    A(f"s_mov_b32 s{d+1}, s{hi}")
    A(f"s_mov_b32 s{d+2}, {nbytes}")
    A(f"s_mov_b32 s{d+3}, 0x00020000")

def kd(name, vgpr, sgpr=102, accum=None):
    accum = accum or ((vgpr + 3) // 4 * 4)
    return f""".amdhsa_kernel {name}
  .amdhsa_next_free_vgpr {vgpr}
  .amdhsa_next_free_sgpr {sgpr}
  .amdhsa_accum_offset {accum}
  .amdhsa_group_segment_fixed_size 0
  .amdhsa_kernarg_size 104
  .amdhsa_user_sgpr_count 2
  .amdhsa_user_sgpr_kernarg_segment_ptr 1
  .amdhsa_system_sgpr_workgroup_id_x 1
.end_amdhsa_kernel
"""

STAMPS = False
KIDX = 0
TIMELINE = False
def stamp(A, i):
    if not STAMPS: return
    A("s_memtime s[98:99]")
    if TIMELINE and i in (0, 7):
        A("s_memrealtime s[96:97]")
    A("s_waitcnt lgkmcnt(0)")
    A(f"s_mov_b32 s{80+i}, s98")
    if TIMELINE and i in (0, 7):
        A(f"s_mov_b32 s{90 + (i == 7)}, s96")
def stamp_dump(A, n, wg=0, DV=2):
    if not STAMPS: return
    l = A.newlabel("nodump")
    A(f"s_cmp_eq_u32 s2, {wg}")
    A(f"s_cbranch_scc0 {l}")
    if TIMELINE:
        A("s_cmp_eq_u32 s38, 0")
        A(f"s_cbranch_scc0 {l}")
        A("s_load_dwordx2 s[96:97], s[0:1], 88")
        A("s_waitcnt lgkmcnt(0)")
        A(f"s_add_u32 s92, s96, {512 * (TL_DST - asmlib_KIDX())}") if TL_DST >= asmlib_KIDX() else A(f"s_sub_u32 s92, s96, {512 * (asmlib_KIDX() - TL_DST)}")
        A("s_addc_u32 s93, s97, 0") if TL_DST >= asmlib_KIDX() else A("s_subb_u32 s93, s97, 0")
        A("s_mov_b32 s94, 256")
        A("s_mov_b32 s95, 0x00020000")
        vals = ["s90", "s91"]
        A("s_sub_u32 s98, s87, s80")
        A(f"s_sub_u32 s99, s{80 + TL_MID[asmlib_KIDX()]}, s80")
        A(f"s_sub_u32 s89, s{80 + TL_MID2[asmlib_KIDX()]}, s80")
        for j, r in enumerate(["s90", "s91", "s98", "s99", "s89"]):
            A(f"v_mov_b32 v{DV}, {r}")
            A(f"v_mov_b32 v{DV+1}, 0")
            A(f"buffer_store_dword v{DV}, v{DV+1}, s[92:95], 0 offen offset:{20 * asmlib_KIDX() + 4*j}")
        A("s_waitcnt vmcnt(0)")
        A.label(l)
        return
    A("s_load_dwordx2 s[96:97], s[0:1], 88")
    A("s_waitcnt lgkmcnt(0)")
    A("s_mov_b32 s92, s96")
    A("s_mov_b32 s93, s97")
    A("s_mov_b32 s94, 256")
    A("s_mov_b32 s95, 0x00020000")
    A("s_lshl_b32 s98, s38, 5")
    for i in range(n):
        if i == 0:
            A(f"v_mov_b32 v{DV}, s80")
        else:
            A(f"s_sub_u32 s99, s{80+i}, s80")
            A(f"v_mov_b32 v{DV}, s99")
        A(f"v_mov_b32 v{DV+1}, s98")
        A(f"buffer_store_dword v{DV}, v{DV+1}, s[92:95], 0 offen offset:{4*i}")
    A("s_waitcnt vmcnt(0)")
    A.label(l)

TL_MID = [5, 4, 1]
TL_MID2 = [6, 5, 4]
def asmlib_KIDX():
    return KIDX
TL_DST = 2
```

```python
import sys
import asmlib
asmlib.STAMPS = (len(sys.argv) > 2 and sys.argv[2] in ('stamp', 'tl'))
asmlib.TIMELINE = (len(sys.argv) > 2 and sys.argv[2] == 'tl')
from asmlib import *
import k1
from k1 import gen_k1, WS_SIZE
import os
if 'TOUCH' in os.environ: k1.TOUCH = int(os.environ['TOUCH'])
from k2 import gen_k2
from k3 import gen_k3
ref = open("parallel_sum__grouped_kv_mqa__dense_activation_squared_relu__prompt.s.ref").read()
hdr = []
for ln in ref.split("\n"):
    if ln.startswith("; Override") or ln.startswith("; grid=") or "@launch" in ln or not ln.startswith(";"):
        if not ln.startswith(";"): break
        continue
    hdr.append(ln)
kernels = [("k1_kernel", gen_k1, 256, 512, 163840, 180), ("k2_kernel", gen_k2, 256, 512, 163840, 128), ("k3_kernel", gen_k3, 256, 256, 61440, 252)]
out = "\n".join(hdr) + "\n"
for n, g, grid, blk, lds, vg in kernels:
    out += f"; @launch kernel={n} grid=({grid},1,1) block=({blk},1,1) lds={lds}\n"
out += '.amdgcn_target "amdgcn-amd-amdhsa--gfx950"\n.text\n'
for ki, (n, g, grid, blk, lds, vg) in enumerate(kernels):
    asmlib.KIDX = ki
    out += f".globl {n}\n.p2align 8\n.type {n},@function\n" + g(n) + "\n"
out += '.section .rodata,"a"\n'
for n, g, grid, blk, lds, vg in kernels:
    out += ".p2align 6\n" + kd(n, vg)
dst = sys.argv[1] if len(sys.argv) > 1 else "parallel_sum__grouped_kv_mqa__dense_activation_squared_relu__prompt.s"
open(dst, "w").write(out)
print("wrote", dst, len(out))
```

```python
class Asm:
    G = 0
    def __init__(self):
        self.lines = []
        self.uid = 0
    def __call__(self, s):
        for ln in s.strip("\n").split("\n"):
            self.lines.append("    " + ln.strip() if ln.strip() and not ln.strip().endswith(":") else ln.strip())
    def c(self, s):
        self.lines.append("    ; " + s)
    def label(self, name):
        self.lines.append(name + ":")
    def newlabel(self, base):
        Asm.G += 1
        return f"L_{base}_{Asm.G}"
    def text(self):
        return "\n".join(self.lines) + "\n"

def vr(a, n=1):
    return f"v{a}" if n == 1 else f"v[{a}:{a+n-1}]"
def sr(a, n=1):
    return f"s{a}" if n == 1 else f"s[{a}:{a+n-1}]"

def srd(A, d, lo, hi, nbytes):
    A(f"s_mov_b32 s{d}, s{lo}")
    A(f"s_mov_b32 s{d+1}, s{hi}")
    A(f"s_mov_b32 s{d+2}, {nbytes}")
    A(f"s_mov_b32 s{d+3}, 0x00020000")

def kd(name, vgpr, sgpr=102, accum=None):
    accum = accum or ((vgpr + 3) // 4 * 4)
    return f""".amdhsa_kernel {name}
  .amdhsa_next_free_vgpr {vgpr}
  .amdhsa_next_free_sgpr {sgpr}
  .amdhsa_accum_offset {accum}
  .amdhsa_group_segment_fixed_size 0
  .amdhsa_kernarg_size 104
  .amdhsa_user_sgpr_count 2
  .amdhsa_user_sgpr_kernarg_segment_ptr 1
  .amdhsa_system_sgpr_workgroup_id_x 1
.end_amdhsa_kernel
"""

STAMPS = False
KIDX = 0
TIMELINE = False
def stamp(A, i):
    if not STAMPS: return
    A("s_memtime s[98:99]")
    if TIMELINE and i in (0, 7):
        A("s_memrealtime s[96:97]")
    A("s_waitcnt lgkmcnt(0)")
    A(f"s_mov_b32 s{80+i}, s98")
    if TIMELINE and i in (0, 7):
        A(f"s_mov_b32 s{90 + (i == 7)}, s96")
def stamp_dump(A, n, wg=0, DV=2):
    if not STAMPS: return
    l = A.newlabel("nodump")
    A(f"s_cmp_eq_u32 s2, {wg}")
    A(f"s_cbranch_scc0 {l}")
    if TIMELINE:
        A("s_cmp_eq_u32 s38, 0")
        A(f"s_cbranch_scc0 {l}")
        A("s_load_dwordx2 s[96:97], s[0:1], 88")
        A("s_waitcnt lgkmcnt(0)")
        A(f"s_add_u32 s92, s96, {512 * (TL_DST - asmlib_KIDX())}") if TL_DST >= asmlib_KIDX() else A(f"s_sub_u32 s92, s96, {512 * (asmlib_KIDX() - TL_DST)}")
        A("s_addc_u32 s93, s97, 0") if TL_DST >= asmlib_KIDX() else A("s_subb_u32 s93, s97, 0")
        A("s_mov_b32 s94, 256")
        A("s_mov_b32 s95, 0x00020000")
        vals = ["s90", "s91"]
        A("s_sub_u32 s98, s87, s80")
        A(f"s_sub_u32 s99, s{80 + TL_MID[asmlib_KIDX()]}, s80")
        A(f"s_sub_u32 s89, s{80 + TL_MID2[asmlib_KIDX()]}, s80")
        for j, r in enumerate(["s90", "s91", "s98", "s99", "s89"]):
            A(f"v_mov_b32 v{DV}, {r}")
            A(f"v_mov_b32 v{DV+1}, 0")
            A(f"buffer_store_dword v{DV}, v{DV+1}, s[92:95], 0 offen offset:{20 * asmlib_KIDX() + 4*j}")
        A("s_waitcnt vmcnt(0)")
        A.label(l)
        return
    A("s_load_dwordx2 s[96:97], s[0:1], 88")
    A("s_waitcnt lgkmcnt(0)")
    A("s_mov_b32 s92, s96")
    A("s_mov_b32 s93, s97")
    A("s_mov_b32 s94, 256")
    A("s_mov_b32 s95, 0x00020000")
    A("s_lshl_b32 s98, s38, 5")
    for i in range(n):
        if i == 0:
            A(f"v_mov_b32 v{DV}, s80")
        else:
            A(f"s_sub_u32 s99, s{80+i}, s80")
            A(f"v_mov_b32 v{DV}, s99")
        A(f"v_mov_b32 v{DV+1}, s98")
        A(f"buffer_store_dword v{DV}, v{DV+1}, s[92:95], 0 offen offset:{4*i}")
    A("s_waitcnt vmcnt(0)")
    A.label(l)

TL_MID = [5, 4, 1]
TL_MID2 = [6, 5, 4]
def asmlib_KIDX():
    return KIDX
TL_DST = 2

TRACE = False
TR_BASE = 0
def trace_init(A, reg):
    if not TRACE: return
    A("s_mov_b32 s97, 0")
    A(f"v_mov_b32 v{reg}, 0")
RT = False
LEVEL = 1
def trace(A, reg, lvl=1):
    if not TRACE or lvl > LEVEL: return
    A("s_memrealtime s[98:99]" if RT else "s_memtime s[98:99]")
    A("s_waitcnt lgkmcnt(0)")
    A("s_mov_b32 m0, s97")
    A("s_nop 0")
    A(f"v_writelane_b32 v{reg}, s98, m0")
    A("s_add_u32 s97, s97, 1")
def trace_dump(A, reg, slot, tmp):
    if not TRACE: return
    A("s_lshl_b32 s98, s2, 3")
    A("s_add_u32 s98, s98, s38")
    A("s_lshl_b32 s98, s98, 1")
    A(f"s_add_u32 s98, s98, {slot}")
    A("s_lshl_b32 s98, s98, 8")
    A(f"s_add_u32 s98, s98, {TR_BASE}")
    A(f"v_lshlrev_b32 v{tmp}, 2, v1")
    A(f"buffer_store_dword v{reg}, v{tmp}, s[24:27], s98 offen")
    A("s_waitcnt vmcnt(0)")
```

```python
from asmlib import *
import asmlib, struct

WS_KV = 0
WS_H = 163840
WS_W2T = WS_H + 6291456
WS_O = WS_W2T + 2785280
WS_FLG = WS_O + 2621440
FLG_KV, FLG_P1, FLG_O = WS_FLG, WS_FLG + 32768, WS_FLG + 65536
WS_TR = WS_FLG + 98304
WS_SIZE = WS_TR + 256*8*2*256
asmlib.TR_BASE = WS_TR

QSCALE = (20 ** -0.5) * 1.4426950408889634
OFF = 88.0
VMASK = 0x000FFFFF
BIG = 0x40000000

def magic(d, maxp):
    for sh in range(8, 24):
        m = (1 << sh) // d + 1
        if m * maxp < (1 << 32) and m < (1 << 24) and all((p * m) >> sh == p // d for p in range(maxp + 1)):
            return m, sh
    raise Exception("no magic")
def f2u(x):
    return struct.unpack("<I", struct.pack("<f", x))[0]

STG0 = 81920
STG = 18432
R_WQ = 12288
KVW = STG0 + 3 * STG
SPARE = KVW + 25600
SPIN_LIMIT = 20000

S_RB, S_CG, S_W = 36, 37, 38
S_NONCE = 76

def divmod_lane(A, src, d, maxp, q, r, tmp=None):
    m, s = magic(d, maxp)
    A(f"v_mul_u32_u24 v{q}, {m}, v{src}")
    A(f"v_lshrrev_b32 v{q}, {s}, v{q}")
    A(f"v_mul_u32_u24 v{r}, {d}, v{q}")
    A(f"v_sub_u32 v{r}, v{src}, v{r}")

def poll_flags(A, vaddr_setup, nloads, name):
    lp = A.newlabel("poll"); ok = A.newlabel("pollok")
    A("s_mov_b32 s59, 0")
    A.label(lp)
    for i in range(nloads):
        vaddr_setup(i)
        A(f"buffer_load_dword v{253+i}, v252, s[24:27], 0 offen sc1")
    A("s_waitcnt vmcnt(0)")
    A(f"v_xor_b32 v253, s{S_NONCE}, v253")
    for i in range(1, nloads):
        A(f"v_xor_b32 v{253+i}, s{S_NONCE}, v{253+i}")
        A(f"v_or_b32 v253, v253, v{253+i}")
    A("v_cmp_ne_u32 vcc, 0, v253")
    A("s_add_u32 s59, s59, 1")
    A("s_nop 3")
    A("s_cmp_eq_u64 vcc, 0")
    A(f"s_cbranch_scc1 {ok}")
    A(f"s_cmp_gt_u32 s59, {SPIN_LIMIT}")
    A(f"s_cbranch_scc1 {ok}")
    A("s_sleep 4")
    A(f"s_branch {lp}")
    A.label(ok)

def publish(A, base):
    A(f"s_lshl_b32 s58, s{S_RB}, 3")
    A(f"s_add_u32 s58, s58, s{S_CG}")
    A("s_lshl_b32 s58, s58, 7")
    A(f"s_add_u32 s58, s58, {base}")
    A("v_mov_b32 v252, 0")
    A(f"v_mov_b32 v253, s{S_NONCE}")
    A("s_mov_b64 exec, 1")
    A("buffer_store_dword v253, v252, s[24:27], s58 offen sc1")
    A("s_mov_b64 exec, -1")

def gen(name):
    A = Asm()
    A.label(name)
    A("s_cmp_ge_u32 s2, 256")
    A(f"s_cbranch_scc1 L_{name}_end")
    A("s_load_dwordx4 s[44:47], s[0:1], 0")
    A("s_load_dwordx4 s[48:51], s[0:1], 16")
    A("s_load_dwordx2 s[52:53], s[0:1], 32")
    A("s_load_dwordx4 s[56:59], s[0:1], 48")
    A("s_load_dwordx4 s[60:63], s[0:1], 64")
    A("s_load_dwordx4 s[64:67], s[0:1], 80")
    A("s_load_dwordx2 s[68:69], s[0:1], 96")
    A("s_and_b32 s39, s2, 7")
    A("s_lshr_b32 s40, s2, 3")
    A(f"s_lshr_b32 s{S_RB}, s39, 1")
    A(f"s_lshl_b32 s{S_RB}, s{S_RB}, 3")
    A("s_lshr_b32 s41, s40, 2")
    A(f"s_add_u32 s{S_RB}, s{S_RB}, s41")
    A("s_and_b32 s41, s39, 1")
    A(f"s_lshl_b32 s{S_CG}, s41, 2")
    A("s_and_b32 s41, s40, 3")
    A(f"s_add_u32 s{S_CG}, s{S_CG}, s41")
    A("v_lshrrev_b32 v2, 6, v0")
    A("v_and_b32 v1, 63, v0")
    A(f"v_readfirstlane_b32 s{S_W}, v2")
    A("v_lshrrev_b32 v3, 4, v1")
    A("v_and_b32 v4, 15, v1")
    A(f"s_lshl_b32 s39, s{S_W}, 3")
    A("v_add_u32 v5, s39, v3")
    A("v_mul_u32_u24 v6, 1280, v5")
    A("v_lshl_add_u32 v6, v4, 4, v6")
    A("s_waitcnt lgkmcnt(0)")
    trace_init(A, 250)
    trace(A, 250)
    srd(A, 8, 44, 45, 2621440)
    XR = 80
    A(f"s_mul_i32 s39, s{S_RB}, 81920")
    A("s_add_u32 s40, s39, 5120")
    for p in range(2):
        for i in range(5):
            A(f"buffer_load_dwordx4 {vr(XR + 20*p + 4*i, 4)}, v6, s[8:11], s{39+p} offen offset:{256*i}")
    srd(A, 12, 46, 47, 819200)
    srd(A, 16, 56, 57, 1966080)
    srd(A, 24, 68, 69, WS_SIZE)
    srd(A, 32, 58, 59, 3072)
    A(f"s_cmp_lt_u32 s{S_CG}, 2")
    A("s_cselect_b32 s20, s48, s50")
    A("s_cselect_b32 s21, s49, s51")
    A("s_mov_b32 s22, 25600")
    A("s_mov_b32 s23, 0x00020000")
    A(f"s_cmp_ge_u32 s{S_W}, 4")
    A(f"s_cbranch_scc1 L_{name}_roleL")
    role_C(A, name)
    A.label(f"L_{name}_roleL")
    role_L(A, name)
    A.label(f"L_{name}_end")
    A("s_endpgm")
    return A.text()

XR = 80
def layernorm(A):
    A("v_mov_b32 v16, 0x3f803f80")
    for p in range(2):
        S, Qs = 18 + 4*p, 20 + 4*p
        for r in (S, S+1, Qs, Qs+1):
            A(f"v_mov_b32 v{r}, 0")
    for p in range(2):
        S, Qs = 18 + 4*p, 20 + 4*p
        for i in range(20):
            x = XR + 20*p + i
            A(f"v_dot2_f32_bf16 v{S + (i&1)}, v{x}, v16, v{S + (i&1)}")
            A(f"v_dot2_f32_bf16 v{Qs + (i&1)}, v{x}, v{x}, v{Qs + (i&1)}")
    A("s_nop 3")
    for p in range(2):
        S, Qs = 18 + 4*p, 20 + 4*p
        A(f"v_add_f32 v{S}, v{S}, v{S+1}")
        A(f"v_add_f32 v{Qs}, v{Qs}, v{Qs+1}")
    for sh in (8, 4, 2, 1):
        A("s_nop 1")
        for p in range(2):
            S, Qs = 18 + 4*p, 20 + 4*p
            A(f"v_add_f32_dpp v{S}, v{S}, v{S} row_ror:{sh} row_mask:0xf bank_mask:0xf")
            A(f"v_add_f32_dpp v{Qs}, v{Qs}, v{Qs} row_ror:{sh} row_mask:0xf bank_mask:0xf")
    A(f"s_mov_b32 s39, {f2u(1.0 / 640)}")
    A(f"s_mov_b32 s40, {f2u(1e-5)}")
    for p in range(2):
        S, Qs = 18 + 4*p, 20 + 4*p
        A(f"v_mul_f32 v{S}, s39, v{S}")
        A(f"v_mul_f32 v{Qs}, s39, v{Qs}")
        A(f"v_fma_f32 v{Qs}, -v{S}, v{S}, v{Qs}")
        A(f"v_max_f32 v{Qs}, 0, v{Qs}")
        A(f"v_add_f32 v{Qs}, s40, v{Qs}")
        A(f"v_rsq_f32 v{Qs}, v{Qs}")
        A("s_nop 0")
        A(f"v_mul_f32 v{S}, v{S}, v{Qs}")
        A(f"v_sub_f32 v{S}, 0, v{S}")
    for p in range(2):
        A(f"v_add_u32 v7, {4*p}, v5")
        A("v_and_b32 v8, 15, v7")
        A("v_xor_b32 v8, v8, v4")
        A("v_mul_u32_u24 v7, 1280, v7")
        A(f"v_lshl_add_u32 v{26+p}, v8, 4, v7")
    for p in range(2):
        S, Qs = 18 + 4*p, 20 + 4*p
        for i in range(5):
            for j in range(4):
                x = XR + 20*p + 4*i + j
                A(f"v_lshlrev_b32 v28, 16, v{x}")
                A(f"v_and_b32 v29, 0xffff0000, v{x}")
                A(f"v_fma_f32 v28, v28, v{Qs}, v{S}")
                A(f"v_fma_f32 v29, v29, v{Qs}, v{S}")
                A(f"v_cvt_pk_bf16_f32 v{x}, v28, v29")
            A(f"ds_write_b128 v{26+p}, {vr(XR + 20*p + 4*i, 4)} offset:{256*i}")

def xaddr(A, dst0, tmp=16):
    A(f"v_and_b32 v{tmp}, 31, v1")
    A(f"v_lshrrev_b32 v{tmp+1}, 5, v1")
    A(f"v_and_b32 v{tmp+2}, 15, v{tmp}")
    A(f"v_xor_b32 v{tmp+2}, v{tmp+2}, v{tmp+1}")
    A(f"v_mul_u32_u24 v{tmp+3}, 1280, v{tmp}")
    A(f"v_lshl_add_u32 v{tmp+3}, v{tmp+2}, 4, v{tmp+3}")
    for k in range(8):
        A(f"v_xor_b32 v{dst0+k}, {k << 5}, v{tmp+3}")

def trlane(A, k, colb, tmp):
    A(f"v_lshrrev_b32 v{k}, 5, v1")
    A(f"v_bfe_u32 v{tmp}, v1, 2, 2")
    A(f"v_lshl_add_u32 v{k}, v{k}, 3, v{tmp}")
    A(f"v_bfe_u32 v{colb}, v1, 4, 1")
    A(f"v_lshlrev_b32 v{colb}, 5, v{colb}")
    A(f"v_and_b32 v{tmp+1}, 3, v1")
    A(f"v_lshl_add_u32 v{colb}, v{tmp+1}, 3, v{colb}")

from fused_c import role_C
from fused_l import role_L

def tail_common(A, name, is_L, l0=False):
    W = S_W
    FACC = 8
    PART = 102400
    TR = 100
    trace_init(A, TR)
    trace(A, TR)
    A("v_lshlrev_b32 v2, 4, v1")
    A(f"s_and_b32 s42, s{W}, 3")
    if is_L:
        srd(A, 12, 62, 63, 1280)
        srd(A, 16, 64, 65, 2621440)
        A("v_and_b32 v3, 15, v1")
        A("v_lshrrev_b32 v4, 4, v1")
        A("v_mul_u32_u24 v5, 1280, v3")
        A("v_lshl_add_u32 v5, v4, 3, v5")
        A("v_lshlrev_b32 v6, 3, v4")
        A(f"s_lshl_b32 s39, s{S_RB}, 2")
        A("s_add_u32 s39, s39, s42")
        A("s_mul_i32 s39, s39, 20480")
        A(f"s_mul_i32 s40, s{S_CG}, 160")
        A("s_add_u32 s52, s39, s40")
        A("s_mov_b32 s53, s40")
        for nt in range(5):
            A(f"buffer_load_dwordx2 {vr(232 + 2*nt, 2)}, v5, s[8:11], s52 offen offset:{32*nt}")
        for nt in range(5):
            A(f"buffer_load_dwordx2 {vr(242 + 2*nt, 2)}, v6, s[12:15], s53 offen offset:{32*nt}")
    A(f"s_mul_i32 s39, s{S_CG}, 348160")
    A(f"s_add_u32 s39, s39, {WS_W2T}")
    A(f"s_lshl_b32 s40, s{W}, 10")
    A("s_add_u32 s39, s39, s40")
    for i in range(12 if is_L else 13):
        A(f"s_add_u32 m0, s40, {8192*i}")
        A(f"s_add_u32 s41, s39, {8192*i}")
        A(f"buffer_load_dwordx4 v2, s[24:27], s41 offen sc1 lds")
    if is_L:
        if l0:
            publish(A, FLG_O)
        A("s_nop 7")
        for dj in range(1, 4):
            A(f"s_add_u32 s39, s42, {dj}")
            A("s_and_b32 s39, s39, 3")
            A("s_mul_i32 s40, s39, 15360")
            A(f"s_add_u32 s40, s40, {PART + (3 - dj) * 5120}")
            A("v_add_u32 v7, s40, v2")
            done = A.newlabel("wdone")
            for j in range(4):
                nxt = A.newlabel("wn")
                A(f"s_cmp_eq_u32 s39, {j}")
                A(f"s_cbranch_scc0 {nxt}")
                for nt in range(5):
                    A(f"ds_write_b128 v7, {vr(FACC + 20*j + 4*nt, 4)} offset:{1024*nt}")
                A(f"s_branch {done}")
                A.label(nxt)
            A.label(done)
        done = A.newlabel("mdone")
        for j in range(4):
            nxt = A.newlabel("mn")
            A(f"s_cmp_eq_u32 s42, {j}")
            A(f"s_cbranch_scc0 {nxt}")
            for r in range(20):
                A(f"v_mov_b32 v{112 + r}, v{FACC + 20*j + r}")
            A(f"s_branch {done}")
            A.label(nxt)
        A.label(done)
        if l0:
            def setup(j):
                A(f"s_lshl_b32 s39, s{S_RB}, 3")
                A("v_and_b32 v252, 7, v1")
                A("v_add_u32 v252, s39, v252")
                A("v_lshlrev_b32 v252, 7, v252")
                A(f"v_add_u32 v252, {FLG_O}, v252")
            poll_flags(A, setup, 1, name)
    else:
        for r in range(20):
            A(f"v_mov_b32 v{112 + r}, 0")
    trace(A, TR)
    A("s_waitcnt vmcnt(0) lgkmcnt(0)")
    trace(A, TR)
    A("s_barrier")
    trace(A, TR)
    A(f"s_lshl_b32 s39, s{S_RB}, 2")
    A("s_add_u32 s39, s39, s42")
    A("s_mul_i32 s39, s39, 20")
    if is_L: A("s_add_u32 s39, s39, 10")
    A("s_lshl_b32 s39, s39, 10")
    A(f"s_add_u32 s39, s39, {WS_O}")
    for k in range(10):
        if k % 4 == 0 and k:
            A("s_add_u32 s39, s39, 4096")
        A(f"buffer_load_dwordx4 {vr(132 + 4*k, 4)}, v2, s[24:27], s39 offen offset:{1024*(k%4)} sc1")
    if is_L:
        A("s_mul_i32 s40, s42, 15360")
        A(f"s_add_u32 s40, s40, {PART}")
        A("v_add_u32 v7, s40, v2")
        for idx in range(3):
            for nt in range(5):
                A(f"ds_read_b128 {vr(172 + 20*idx + 4*nt, 4)}, v7 offset:{5120*idx + 1024*nt}")
        A("s_waitcnt lgkmcnt(0)")
        for r in range(20):
            A(f"v_add_f32 v{112+r}, v{112+r}, v{172+r}")
            A(f"v_add_f32 v{192+r}, v{192+r}, v{212+r}")
        for r in range(20):
            A(f"v_add_f32 v{112+r}, v{112+r}, v{192+r}")
        for nt in range(5):
            for hw in range(2):
                xr = 232 + 2*nt + hw; br = 242 + 2*nt + hw; a = 112 + 4*nt + 2*hw
                A(f"v_lshlrev_b32 v8, 16, v{xr}")
                A(f"v_and_b32 v9, 0xffff0000, v{xr}")
                A(f"v_lshlrev_b32 v10, 16, v{br}")
                A(f"v_and_b32 v11, 0xffff0000, v{br}")
                A(f"v_add_f32 v{a}, v{a}, v8")
                A(f"v_add_f32 v{a+1}, v{a+1}, v9")
                A(f"v_add_f32 v{a}, v{a}, v10")
                A(f"v_add_f32 v{a+1}, v{a+1}, v11")
    trace(A, TR)
    base = 51200 if is_L else 0
    A(f"v_add_u32 v12, {base}, v2")
    WB = (172, 192)
    def wreads(k):
        for nt in range(5):
            A(f"ds_read_b128 {vr(WB[k%2] + 4*nt, 4)}, v12 offset:{(k*5 + nt)*1024}")
    wreads(0)
    for k in range(10):
        if k + 1 < 10:
            wreads(k + 1)
        A(f"s_waitcnt vmcnt({9-k}) lgkmcnt({5 if k + 1 < 10 else 0})")
        for nt in range(5):
            a = 112 + 4*nt
            A(f"v_mfma_f32_16x16x32_bf16 {vr(a,4)}, {vr(WB[k%2] + 4*nt, 4)}, {vr(132 + 4*k, 4)}, {vr(a,4)}")
    A("s_nop 7")
    A("s_nop 3")
    trace(A, TR)
    A("s_barrier")
    trace(A, TR)
    A("s_mul_i32 s40, s42, 5120")
    A(f"s_add_u32 s40, s40, {PART}")
    A("v_add_u32 v7, s40, v2")
    if not is_L:
        for nt in range(5):
            A(f"ds_write_b128 v7, {vr(112 + 4*nt, 4)} offset:{1024*nt}")
        A("s_waitcnt lgkmcnt(0)")
        A("s_barrier")
        trace(A, TR)
        trace_dump(A, TR, 1, 8)
        A("s_endpgm")
    else:
        A("s_barrier")
        for nt in range(5):
            A(f"ds_read_b128 {vr(172 + 4*nt, 4)}, v7 offset:{1024*nt}")
        A("s_waitcnt lgkmcnt(0)")
        for r in range(20):
            A(f"v_add_f32 v{112+r}, v{112+r}, v{172+r}")
        for nt in range(5):
            A(f"v_cvt_pk_bf16_f32 v{192 + 2*nt}, v{112 + 4*nt}, v{113 + 4*nt}")
            A(f"v_cvt_pk_bf16_f32 v{193 + 2*nt}, v{114 + 4*nt}, v{115 + 4*nt}")
            A(f"buffer_store_dwordx2 {vr(192 + 2*nt, 2)}, v5, s[16:19], s52 offen offset:{32*nt}")
        trace(A, TR)
        A("s_waitcnt vmcnt(0)")
        trace(A, TR)
        trace_dump(A, TR, 1, 8)
        A("s_endpgm")
```

```python
from asmlib import *
import fused as F

ACCQ, ACCH, BIAS = 128, 160, 208
SETS = (32, 80)
SA, SB, PA, PB, OA, OB, CA, CB = 32, 48, 64, 72, 80, 96, 112, 128
K1, K2, V1, V2 = 144, 148, 152, 156
Q1A, Q1B, Q2A, Q2B = 208, 212, 216, 218
MA, MB = 5, 6

def qk(S, Q1, Q2, C):
    c = "0" if C is None else vr(C, 16)
    return [f"v_mfma_f32_32x32x16_bf16 {vr(S,16)}, {vr(K1,4)}, {vr(Q1,4)}, {c}",
            f"v_mfma_f32_32x32x8_bf16 {vr(S,16)}, {vr(K2,2)}, {vr(Q2,2)}, {vr(S,16)}"]
def pv(O, P):
    return [f"v_mfma_f32_32x32x16_bf16 {vr(O,16)}, {vr(V1,4)}, {vr(P,4)}, {vr(O,16)}",
            f"v_mfma_f32_32x32x16_bf16 {vr(O,16)}, {vr(V2,4)}, {vr(P+4,4)}, {vr(O,16)}"]
def readK1(A, off): A(f"ds_read_b128 {vr(K1,4)}, v2 offset:{off}")
def readK2(A, off): A(f"ds_read_b64 {vr(K2,2)}, v3 offset:{off}")
def readV(A, off):
    A("s_mov_b64 exec, s[60:61]")
    A(f"ds_read_b128 {vr(V1,4)}, v4 offset:{off}")
    A(f"ds_read_b128 {vr(V2,4)}, v4 offset:{off + 640}")
    A("s_mov_b64 exec, -1")
def half(A, S, P, ms, hooks):
    e = [f"v_exp_f32 v{S+i}, v{S+i}" for i in range(16)]
    c = [f"v_cvt_pk_bf16_f32 v{P+i}, v{S+2*i}, v{S+2*i+1}" for i in range(8)]
    def M(i):
        if ("pre", i) in hooks: hooks[("pre", i)]()
        A(ms[i])
        if i in hooks: hooks[i]()
    M(0)
    for x in e[0:4]: A(x)
    M(1)
    for x in e[4:8]: A(x)
    A(c[0]); A(c[1])
    M(2)
    for x in e[8:12]: A(x)
    A(c[2]); A(c[3])
    M(3)
    for x in e[12:16]: A(x)
    for x in c[4:8]: A(x)
def rowmax16(A, S, dst, first):
    if first:
        A(f"v_max3_f32 v{dst}, v{S}, v{S+1}, v{S+2}")
        i = 3
    else:
        i = 0
    while i + 1 < 16:
        A(f"v_max3_f32 v{dst}, v{dst}, v{S+i}, v{S+i+1}")
        i += 2
    if i < 16:
        A(f"v_max_f32 v{dst}, v{dst}, v{S+i}")
def crossmax(A, M):
    A(f"v_mov_b32 v7, v{M}")
    A("s_nop 1")
    A(f"v_permlane32_swap_b32 v7, v{M}")
    A("s_nop 1")
    A(f"v_max_f32 v{M}, v{M}, v7")
def kv_addr_init(A):
    A("v_lshlrev_b32 v2, 4, v1")
    A(f"v_add_u32 v2, {F.STG0}, v2")
    A("v_and_b32 v7, 31, v1")
    A("v_lshlrev_b32 v3, 3, v7")
    A(f"v_add_u32 v3, {F.STG0 + 1024}, v3")
    A("v_lshrrev_b32 v8, 5, v1")
    A("v_mul_u32_u24 v4, 320, v8")
    A("v_lshl_add_u32 v4, v7, 4, v4")
    A(f"v_add_u32 v4, {F.STG0 + 40960}, v4")

def role_C(A, name):
    W = F.S_W
    A(f"s_mul_i32 s39, s{F.S_CG}, 384")
    A(f"s_lshr_b32 s40, s{W}, 1")
    A("s_mul_i32 s40, s40, 192")
    A("s_add_u32 s39, s39, s40")
    A("v_lshrrev_b32 v7, 5, v1")
    A("v_lshlrev_b32 v7, 3, v7")
    for i in range(3):
        for q in range(4):
            A(f"buffer_load_dwordx2 {vr(BIAS + 8*i + 2*q, 2)}, v7, s[32:35], s39 offen offset:{64*i + 16*q}")
    trace(A, 250)
    A("s_waitcnt vmcnt(12)")
    F.layernorm(A)
    F.xaddr(A, 2)
    A(f"s_and_b32 s41, s{W}, 1")
    A("s_mul_i32 s42, s41, 40960")
    A("s_sub_u32 s43, 40960, s42")
    for k in range(8):
        A(f"v_add_u32 v{18+k}, s43, v{2+k}")
    for k in range(8):
        A(f"v_add_u32 v{2+k}, s42, v{2+k}")
    F.trlane(A, 26, 27, 28)
    A("v_mul_u32_u24 v10, 192, v26")
    A("v_add_u32 v10, v10, v27")
    A(f"s_mul_i32 s39, s{W}, 40")
    A(f"s_add_u32 s39, s39, {F.STG0 + F.R_WQ}")
    A("v_add_u32 v10, s39, v10")
    A("v_lshrrev_b32 v29, 1, v28")
    A(f"s_lshr_b32 s40, s{W}, 1")
    A("s_mul_i32 s40, s40, 3")
    for i in range(3):
        A(f"s_add_u32 s39, s40, {i}")
        A(f"v_xor_b32 v30, s39, v29")
        A(f"v_mul_u32_u24 v{11+i}, 384, v26")
        A(f"v_lshl_add_u32 v{11+i}, v30, 6, v{11+i}")
        A(f"v_add_u32 v{11+i}, v{11+i}, v27")
        A(f"v_add_u32 v{11+i}, {F.STG0}, v{11+i}")
    A("s_waitcnt vmcnt(0)")
    for i in range(3):
        for q in range(4):
            a = ACCH + 16*i + 4*q
            b = BIAS + 8*i + 2*q
            A(f"v_lshlrev_b32 v{a}, 16, v{b}")
            A(f"v_and_b32 v{a+1}, 0xffff0000, v{b}")
            A(f"v_lshlrev_b32 v{a+2}, 16, v{b+1}")
            A(f"v_and_b32 v{a+3}, 0xffff0000, v{b+1}")
    for r in range(32):
        A(f"v_mov_b32 v{ACCQ+r}, 0")
    def setstage():
        for i in range(4):
            A(f"v_add_u32 v{26+i}, s44, v{10+i}")
    def reads(cs, st):
        L = []
        b = SETS[st]
        for ks in range(2):
            xa = 2*cs + ks
            L.append(f"ds_read_b128 {vr(b + 8*ks, 4)}, v{2+xa}")
            L.append(f"ds_read_b128 {vr(b + 8*ks + 4, 4)}, v{18+xa}")
            L.append(f"ds_read_b64_tr_b16 {vr(b + 16 + 4*ks, 2)}, v26 offset:{16*ks*192}")
            L.append(f"ds_read_b64_tr_b16 {vr(b + 18 + 4*ks, 2)}, v26 offset:{(16*ks+4)*192}")
            for i in range(3):
                L.append(f"ds_read_b64_tr_b16 {vr(b + 24 + 12*ks + 4*i, 2)}, v{27+i} offset:{16*ks*384}")
                L.append(f"ds_read_b64_tr_b16 {vr(b + 26 + 12*ks + 4*i, 2)}, v{27+i} offset:{(16*ks+4)*384}")
        return L
    def mfmas(st):
        L = []
        b = SETS[st]
        for ks in range(2):
            for i in range(3):
                a = ACCH + 16*i
                L.append(f"v_mfma_f32_32x32x16_bf16 {vr(a,16)}, {vr(b + 24 + 12*ks + 4*i, 4)}, {vr(b + 8*ks, 4)}, {vr(a,16)}")
            for s in range(2):
                a = ACCQ + 16*s
                L.append(f"v_mfma_f32_32x32x16_bf16 {vr(a,16)}, {vr(b + 16 + 4*ks, 4)}, {vr(b + 8*ks + 4*s, 4)}, {vr(a,16)}")
        return L
    A("s_mov_b32 s44, 0")
    setstage()
    A("s_waitcnt lgkmcnt(0)")
    trace(A, 250)
    A("s_barrier")
    trace(A, 250)
    for ln in reads(0, 0): A(ln)
    A("s_mov_b32 s43, 5")
    lp = A.newlabel("gemm1")
    A.label(lp)
    for s in range(4):
        st = s % 2
        A(f"s_add_u32 s44, s44, {F.STG}")
        A(f"s_cmp_eq_u32 s44, {3*F.STG}")
        A("s_cselect_b32 s44, 0, s44")
        A("s_waitcnt lgkmcnt(0)")
        A("s_barrier")
        trace(A, 250)
        setstage()
        if s == 3:
            for k in range(8):
                A(f"v_add_u32 v{2+k}, 256, v{2+k}")
                A(f"v_add_u32 v{18+k}, 256, v{18+k}")
        ms = mfmas(st)
        rd = reads((s + 1) % 4, 1 - st)
        for i, m in enumerate(ms):
            A(m)
            for ln in rd[2*i:2*i+2]: A(ln)
    A("s_sub_u32 s43, s43, 1")
    A("s_cmp_lg_u32 s43, 0")
    A(f"s_cbranch_scc1 {lp}")
    A("s_waitcnt lgkmcnt(0)")
    trace(A, 250)
    A("s_nop 15")
    A("s_nop 3")
    A("v_lshrrev_b32 v17, 5, v1")
    A("v_cmp_eq_u32 s[62:63], 0, v17")
    A(f"s_mov_b32 s40, {F.f2u(F.QSCALE)}")
    for s, (Q1, Q2) in enumerate(((Q1A, Q2A), (Q1B, Q2B))):
        a = ACCQ + 16*s
        for r in range(12):
            A(f"v_mul_f32 v{a+r}, s40, v{a+r}")
        for j in range(4):
            A(f"v_cvt_pk_bf16_f32 v{Q1+j}, v{a+2*j}, v{a+2*j+1}")
        for j in range(2):
            A(f"v_cvt_pk_bf16_f32 v{Q2+j}, v{a+8+2*j}, v{a+9+2*j}")
            A(f"v_cndmask_b32 v{Q2+j}, 0, v{Q2+j}, s[62:63]")
    A("v_and_b32 v16, 31, v1")
    A("v_lshrrev_b32 v18, 4, v16")
    A("v_mul_u32_u24 v18, 49152, v18")
    A("v_and_b32 v19, 15, v16")
    A("v_lshl_add_u32 v19, v17, 4, v19")
    A("v_lshl_add_u32 v18, v19, 4, v18")
    A(f"s_lshl_b32 s39, s{F.S_RB}, 2")
    A(f"s_and_b32 s41, s{W}, 1")
    A("s_lshl_b32 s40, s41, 1")
    A("s_add_u32 s39, s39, s40")
    A("s_mul_i32 s39, s39, 48")
    A(f"s_mul_i32 s40, s{F.S_CG}, 6")
    A("s_add_u32 s39, s39, s40")
    A(f"s_lshr_b32 s40, s{W}, 1")
    A("s_mul_i32 s40, s40, 3")
    A("s_add_u32 s39, s39, s40")
    A("s_lshl_b32 s39, s39, 10")
    A(f"s_add_u32 s39, s39, {F.WS_H}")
    for i in range(3):
        a = ACCH + 16*i
        for r in range(16):
            A(f"v_max_f32 v{a+r}, 0, v{a+r}")
        for r in range(16):
            A(f"v_mul_f32 v{a+r}, v{a+r}, v{a+r}")
        for u in range(2):
            d = 220 + 8*i + 4*u
            for j in range(4):
                A(f"v_cvt_pk_bf16_f32 v{d + j}, v{a + 8*u + 2*j}, v{a + 8*u + 2*j + 1}")
            A(f"buffer_store_dwordx4 {vr(d, 4)}, v18, s[24:27], s39 offen offset:{1024*i + 512*u} sc1")
    kv_addr_init(A)
    A(f"s_mov_b32 s60, {F.VMASK}")
    A(f"s_mov_b32 s61, {F.VMASK}")
    A("v_and_b32 v7, 31, v1")
    A("v_cmp_eq_u32 vcc, 20, v7")
    A("v_mov_b32 v12, 0x3f803f80")
    A("s_nop 0")
    for r in range(8):
        A(f"v_cndmask_b32 v{V1+r}, 0, v12, vcc")
    A("s_mov_b32 s50, 0")
    trace(A, 250)
    A("s_barrier")
    for tile in range(2):
        readK1(A, 1280*tile); readK2(A, 1280*tile)
        A("s_waitcnt lgkmcnt(0)")
        for m in qk(SA, Q1A, Q2A, None): A(m)
        for m in qk(SB, Q1B, Q2B, None): A(m)
        A("s_nop 15")
        A("s_nop 3")
        rowmax16(A, SA, MA, tile == 0)
        rowmax16(A, SB, MB, tile == 0)
    for M in (MA, MB):
        crossmax(A, M)
        A(f"v_add_f32 v{M}, {F.f2u(F.OFF)}, v{M}")
    lmain = A.newlabel("main")
    A.label(lmain)
    for M, C in ((MA, CA), (MB, CB)):
        A(f"v_sub_f32 v{C}, 0, v{M}")
        for r in range(1, 16):
            A(f"v_mov_b32 v{C+r}, v{C}")
    for r in range(16):
        A(f"v_mov_b32 v{OA+r}, 0")
        A(f"v_mov_b32 v{OB+r}, 0")
    for r in range(8):
        A(f"v_mov_b32 v{PB+r}, 0")
    readK1(A, 0); readK2(A, 0)
    readV(A, 0)
    A("s_waitcnt lgkmcnt(0)")
    for m in qk(SA, Q1A, Q2A, CA): A(m)
    A("s_nop 15")
    A("s_mov_b32 s51, 0")
    trace(A, 250)
    lp = A.newlabel("att")
    A.label(lp)
    A("s_cmp_eq_u32 s51, 7")
    A(f"s_mov_b32 s52, {(-(F.STG0 + 28*1280)) & 0xffffffff}")
    A("s_cselect_b32 s52, s52, 5120")
    U = 4
    for t in range(U):
        o = 1280*t
        ms = qk(SB, Q1B, Q2B, CB) + pv(OB, PB)
        if t < U - 1:
            hk1 = (lambda o=o: readK1(A, o + 1280)); hk2 = (lambda o=o: readK2(A, o + 1280))
        else:
            def hk1():
                A("v_add_u32 v2, s52, v2")
                readK1(A, 0)
            def hk2():
                A("v_add_u32 v3, s52, v3")
                readK2(A, 0)
        hooks = {0: hk1, 1: hk2, 3: (lambda o=o: readV(A, o))}
        half(A, SA, PA, ms, hooks)
        ms = qk(SA, Q1A, Q2A, CA) + pv(OA, PA)
        hooks = {("pre", 0): (lambda: A("s_waitcnt lgkmcnt(2)")), ("pre", 2): (lambda: A("s_waitcnt lgkmcnt(0)"))}
        half(A, SB, PB, ms, hooks)
    A("v_add_u32 v4, s52, v4")
    trace(A, 250)
    nb = A.newlabel("nod1")
    A("s_cmp_eq_u32 s51, 1")
    A(f"s_cbranch_scc0 {nb}")
    A("s_cmp_eq_u32 s50, 0")
    A(f"s_cbranch_scc0 {nb}")
    A("s_waitcnt vmcnt(0)")
    A("s_barrier")
    A.label(nb)
    A("s_add_u32 s51, s51, 1")
    A("s_cmp_lg_u32 s51, 16")
    A(f"s_cbranch_scc1 {lp}")
    A("s_nop 1")
    for m in pv(OB, PB): A(m)
    A("s_waitcnt lgkmcnt(0)")
    kv_addr_init(A)
    A("s_nop 15")
    A("s_nop 3")
    trace(A, 250)
    lok = A.newlabel("ok")
    A("v_mov_b32 v7, 0")
    for O in (OA, OB):
        for r in range(12):
            A(f"v_fma_f32 v7, v{O+r}, 0, v7")
    A("v_cmp_u_f32 vcc, v7, v7")
    A("s_cmp_lg_u32 s50, 0")
    A(f"s_cbranch_scc1 {lok}")
    A("s_nop 3")
    A("s_cmp_eq_u64 vcc, 0")
    A(f"s_cbranch_scc1 {lok}")
    A("s_mov_b32 s50, 1")
    A(f"v_mov_b32 v{MA}, 0xff800000")
    A(f"v_mov_b32 v{MB}, 0xff800000")
    A("s_mov_b32 s51, 0")
    lf = A.newlabel("fb")
    A.label(lf)
    readK1(A, 0); readK2(A, 0)
    A("s_waitcnt lgkmcnt(0)")
    for m in qk(SA, Q1A, Q2A, None): A(m)
    for m in qk(SB, Q1B, Q2B, None): A(m)
    A("s_nop 15")
    A("s_nop 3")
    rowmax16(A, SA, MA, False)
    rowmax16(A, SB, MB, False)
    A("s_cmp_eq_u32 s51, 31")
    A(f"s_mov_b32 s52, {(-(F.STG0 + 31*1280)) & 0xffffffff}")
    A("s_cselect_b32 s52, s52, 1280")
    A("v_add_u32 v2, s52, v2")
    A("v_add_u32 v3, s52, v3")
    A("s_add_u32 s51, s51, 1")
    A("s_cmp_lg_u32 s51, 64")
    A(f"s_cbranch_scc1 {lf}")
    kv_addr_init(A)
    crossmax(A, MA)
    crossmax(A, MB)
    A(f"s_branch {lmain}")
    A.label(lok)
    A("v_and_b32 v7, 31, v1")
    A("v_lshrrev_b32 v8, 4, v7")
    A("v_mul_u32_u24 v8, 20480, v8")
    A("v_and_b32 v9, 15, v7")
    A("v_lshl_add_u32 v8, v9, 4, v8")
    A(f"s_lshl_b32 s53, s{F.S_CG}, 2")
    A(f"s_add_u32 s53, s53, s{W}")
    A("s_mul_i32 s53, s53, 20")
    offs = []
    for q in range(3):
        for h in range(2):
            d = 54 + h
            A(f"s_add_u32 s56, s53, {8*q + 4*h}")
            A(f"s_lshr_b32 s{d}, s56, 5")
            A(f"s_lshl_b32 s{d}, s{d}, 10")
            A(f"s_bfe_u32 s57, s56, 0x20003")
            A(f"s_lshl_b32 s57, s57, 8")
            A(f"s_add_u32 s{d}, s{d}, s57")
            A(f"s_and_b32 s57, s56, 7")
            A(f"s_lshl_b32 s57, s57, 1")
            A(f"s_add_u32 s{d}, s{d}, s57")
        if q == 2:
            A(f"s_mov_b32 s55, {F.BIG}")
        A("v_mov_b32 v9, s55")
        A("v_mov_b32 v10, s54")
        A(f"v_cndmask_b32 v{13+q}, v9, v10, s[62:63]")
        A(f"v_add_u32 v{13+q}, v{13+q}, v8")
    for s, O in enumerate((OA, OB)):
        A(f"v_mov_b32 v9, v{O+8}")
        A(f"v_mov_b32 v10, v{O+8}")
        A("s_nop 1")
        A("v_permlane32_swap_b32 v9, v10")
        A("s_nop 1")
        A("v_rcp_f32 v10, v10")
        A("s_nop 0")
        for r in range(12):
            A(f"v_mul_f32 v{O+r}, v{O+r}, v10")
        for j in range(6):
            A(f"v_cvt_pk_bf16_f32 v{SA + 8*s + j}, v{O+2*j}, v{O+2*j+1}")
        A(f"s_and_b32 s52, s{W}, 1")
        A(f"s_xor_b32 s52, s52, {s}")
        A("s_lshl_b32 s52, s52, 1")
        A(f"s_lshl_b32 s56, s{F.S_RB}, 2")
        A("s_add_u32 s52, s52, s56")
        A("s_mul_i32 s52, s52, 20480")
        A(f"s_add_u32 s52, s52, {F.WS_O}")
        for q in range(3):
            A(f"buffer_store_dwordx2 {vr(SA + 8*s + 2*q, 2)}, v{13+q}, s[24:27], s52 offen sc1")
    trace(A, 250)
    A("s_waitcnt vmcnt(0)")
    trace(A, 250)
    trace_dump(A, 250, 0, 8)
    A("s_barrier")
    F.tail_common(A, name, is_L=False)
```

```python
from asmlib import *
import fused as F

FACC = 8
FBUF = [88 + 36*i for i in range(4)]

def kv_pieces(A, qs, l):
    n = 0
    for idx, q in enumerate(qs):
        if idx % 4 != l: continue
        lds = (q * 1024 + F.STG0) if q < 80 else (q - 80) * 1024
        A(f"s_mov_b32 m0, {lds}")
        A(f"s_mov_b32 s58, {F.WS_KV + q*1024}")
        A(f"buffer_load_dwordx4 v2, s[24:27], s58 offen sc1 lds")
        n += 1
    return n

KV_SCHED = {16: list(range(54, 80)), 17: list(range(36, 54)), 18: list(range(0, 18)), 19: list(range(18, 36)) + list(range(80, 160))}

def kv_partial(A):
    W = F.S_W
    A(f"s_sub_u32 s39, s{W}, 4")
    A("s_mul_i32 s39, s39, 10")
    A(f"s_and_b32 s40, s{F.S_CG}, 1")
    A("s_mul_i32 s40, s40, 40960")
    A("v_and_b32 v20, 31, v1")
    A("v_lshrrev_b32 v21, 5, v1")
    A("v_and_b32 v22, 15, v20")
    A("v_xor_b32 v22, v22, v21")
    A("v_mul_u32_u24 v16, 1280, v20")
    A("v_lshl_add_u32 v16, v22, 4, v16")
    F.trlane(A, 20, 21, 22)
    A("v_mul_u32_u24 v17, 40, v20")
    A("v_add_u32 v17, v17, v21")
    A(f"v_add_u32 v17, {F.KVW}, v17")
    for m in range(10):
        A(f"s_add_u32 s41, s39, {m}")
        A("s_and_b32 s42, s41, 7")
        A("s_lshl_b32 s42, s42, 5")
        A("s_lshr_b32 s43, s41, 3")
        A("s_lshl_b32 s43, s43, 8")
        A("s_add_u32 s43, s43, s40")
        A("v_xor_b32 v18, s42, v16")
        A("v_add_u32 v18, s43, v18")
        A("s_mul_i32 s41, s41, 640")
        A("v_add_u32 v19, s41, v17")
        b = 80 + 8*m
        A(f"ds_read_b128 {vr(b,4)}, v18")
        A(f"ds_read_b64_tr_b16 {vr(b+4,2)}, v19")
        A(f"ds_read_b64_tr_b16 {vr(b+6,2)}, v19 offset:160")
    for r in range(16):
        A(f"v_mov_b32 v{64+r}, 0")
    for m in range(10):
        b = 80 + 8*m
        A(f"s_waitcnt lgkmcnt({3*(9-m) if 3*(9-m) < 16 else 15})")
        A(f"v_mfma_f32_32x32x16_bf16 v[64:79], {vr(b+4,4)}, {vr(b,4)}, v[64:79]")

def role_L(A, name):
    W = F.S_W
    A("v_lshlrev_b32 v2, 4, v1")
    A(f"s_cmp_lt_u32 s{F.S_CG}, 4")
    A("s_cselect_b32 s77, 1, 0")
    A(f"s_cmp_eq_u32 s{W}, 4")
    A(f"s_cbranch_scc0 L_{name}_loader")
    service(A, name)
    A.label(f"L_{name}_loader")
    loader(A, name)

def common_after_loop(A, name, l_is0):
    pass

def service(A, name):
    W = F.S_W
    A("s_memrealtime s[40:41]")
    srd(A, 72, 66, 67, 256)
    A("s_waitcnt lgkmcnt(0)")
    A("s_or_b32 s40, s40, 1")
    A("v_mov_b32 v124, s40")
    A("v_mov_b32 v125, 0")
    A("v_mov_b32 v126, 0")
    A("s_mov_b64 exec, 1")
    A("buffer_atomic_cmpswap v[124:125], v126, s[72:75], 0 offen sc0 sc1")
    A("s_mov_b64 exec, -1")
    A("s_mov_b32 s78, s40")
    nd = A.newlabel("nokvw")
    A("s_cmp_eq_u32 s77, 0")
    A(f"s_cbranch_scc1 {nd}")
    for i in range(25):
        A(f"s_mov_b32 m0, {F.KVW + 1024*i}")
        A(f"s_mov_b32 s58, {1024*i}")
        A(f"buffer_load_dwordx4 v2, s[20:23], s58 offen lds")
    A.label(nd)
    A("s_cmp_eq_u32 s77, 0")
    l1 = A.newlabel("w1"); l2 = A.newlabel("w2")
    A(f"s_cbranch_scc1 {l1}")
    A("s_waitcnt vmcnt(26)")
    A(f"s_branch {l2}")
    A.label(l1)
    A("s_waitcnt vmcnt(1)")
    A.label(l2)
    F.layernorm(A)
    A("s_waitcnt vmcnt(0) lgkmcnt(0)")
    A("v_readfirstlane_b32 s40, v124")
    A("s_nop 3")
    A("s_cmp_eq_u32 s40, 0")
    A(f"s_cselect_b32 s{F.S_NONCE}, s78, s40")
    trace(A, 250)
    A("s_barrier")
    trace(A, 250)
    nk = A.newlabel("nokv")
    A("s_cmp_eq_u32 s77, 0")
    A(f"s_cbranch_scc1 {nk}")
    kv_partial(A)
    A.label(nk)
    for i in range(20):
        trace(A, 250)
        A("s_barrier")
        if i == 1:
            sk = A.newlabel("nokv2")
            A("s_cmp_eq_u32 s77, 0")
            A(f"s_cbranch_scc1 {sk}")
            A(f"v_add_u32 v16, {F.KVW}, v2")
            for j in range(12):
                A(f"ds_read_b128 {vr(80 + 4*j, 4)}, v16 offset:{1024*j}")
            A("s_waitcnt lgkmcnt(0)")
            for r in range(16):
                A(f"v_add_f32 v{64+r}, v{64+r}, v{80+r}")
                A(f"v_add_f32 v{96+r}, v{96+r}, v{112+r}")
            for r in range(16):
                A(f"v_add_f32 v{64+r}, v{64+r}, v{96+r}")
            for j in range(6):
                A(f"v_cvt_pk_bf16_f32 v{48+j}, v{64+2*j}, v{65+2*j}")
            A(f"s_lshl_b32 s39, s{F.S_RB}, 1")
            A(f"s_and_b32 s40, s{F.S_CG}, 1")
            A("s_add_u32 s39, s39, s40")
            A("s_lshr_b32 s40, s39, 5")
            A("s_mul_i32 s40, s40, 81920")
            A("s_and_b32 s39, s39, 31")
            A("s_mul_i32 s39, s39, 1280")
            A("s_add_u32 s39, s39, s40")
            if F.WS_KV: A(f"s_add_u32 s39, s39, {F.WS_KV}")
            A("v_and_b32 v16, 31, v1")
            A("v_lshrrev_b32 v17, 5, v1")
            A(f"v_mov_b32 v22, {F.BIG}")
            A("v_cmp_eq_u32 vcc, 0, v17")
            lv = A.newlabel("isV")
            A(f"s_cmp_lt_u32 s{F.S_CG}, 2")
            A(f"s_cbranch_scc0 {lv}")
            A(f"buffer_store_dwordx4 v[48:51], v2, s[24:27], s39 offen sc1")
            A("v_lshlrev_b32 v21, 3, v16")
            A("v_cndmask_b32 v21, v22, v21, vcc")
            A(f"buffer_store_dwordx2 v[52:53], v21, s[24:27], s39 offen offset:1024 sc1")
            A(f"s_branch {sk}")
            A.label(lv)
            A("s_add_u32 s39, s39, 40960")
            A("v_lshrrev_b32 v20, 4, v16")
            A("v_mul_u32_u24 v20, 640, v20")
            A("v_bfe_u32 v21, v16, 2, 1")
            A("v_mul_u32_u24 v21, 320, v21")
            A("v_add_u32 v20, v20, v21")
            A("v_bfe_u32 v21, v16, 3, 1")
            A("v_lshl_add_u32 v20, v21, 3, v20")
            A("v_and_b32 v21, 3, v16")
            A("v_lshl_add_u32 v20, v21, 1, v20")
            A("v_lshl_add_u32 v20, v17, 6, v20")
            A("v_cndmask_b32 v21, v22, v20, vcc")
            for r in range(12):
                off = (r % 4) * 16 + (r // 4) * 128
                va = 20 if r < 8 else 21
                op = "buffer_store_short" if r % 2 == 0 else "buffer_store_short_d16_hi"
                A(f"{op} v{48 + r//2}, v{va}, s[24:27], s39 offen offset:{off} sc1")
            A.label(sk)
        if i == 2:
            A(f"v_mov_b32 v16, {F.SPARE}")
            A(f"v_mov_b32 v17, s{F.S_NONCE}")
            A("ds_write_b32 v16, v17")
            A("s_waitcnt lgkmcnt(0)")
            for p in range(5):
                A(f"v_add_u32 v7, {64*p}, v1")
                F.divmod_lane(A, 7, 10, 320, 8, 9)
                A("v_mul_u32_u24 v8, 1280, v8")
                A(f"v_lshl_add_u32 v{24+p}, v9, 4, v8")
        if i in (3, 4, 5):
            u = i - 3
            sk = A.newlabel("noT")
            A(f"s_add_u32 s39, s{F.S_RB}, {32*u}")
            A("s_cmp_ge_u32 s39, 68")
            A(f"s_cbranch_scc1 {sk}")
            A("s_cmp_lt_u32 s39, 20")
            A("s_cselect_b32 s28, s52, s60")
            A("s_cselect_b32 s29, s53, s61")
            A("s_mov_b32 s40, 819200")
            A("s_cselect_b32 s30, s40, 1966080")
            A("s_mov_b32 s31, 0x00020000")
            A("s_cselect_b32 s40, 0, 20")
            A("s_sub_u32 s40, s39, s40")
            A("s_mul_i32 s40, s40, 40960")
            A(f"s_mul_i32 s41, s{F.S_CG}, 160")
            A("s_add_u32 s40, s40, s41")
            for p in range(5):
                A(f"s_mov_b32 m0, {F.KVW + 5120*u + 1024*p}")
                A("s_nop 0")
                A(f"buffer_load_dwordx4 v{24+p}, s[28:31], s40 offen lds")
            A.label(sk)
        if i == 9:
            A("s_waitcnt vmcnt(0)")
            sk = A.newlabel("nokvf")
            A("s_cmp_eq_u32 s77, 0")
            A(f"s_cbranch_scc1 {sk}")
            F.publish(A, F.FLG_KV)
            A.label(sk)
            A("v_lshrrev_b32 v16, 4, v1")
            A("v_bfe_u32 v17, v1, 2, 2")
            A("v_and_b32 v18, 3, v1")
            A("v_lshlrev_b32 v19, 3, v16")
            A("v_lshrrev_b32 v20, 1, v16")
            A("v_lshlrev_b32 v20, 4, v20")
            A("v_and_b32 v21, 1, v16")
            A("v_lshl_add_u32 v20, v21, 2, v20")
            for rr in (19, 20):
                A(f"v_add_u32 v{rr}, v{rr}, v17")
                A(f"v_mul_u32_u24 v{rr}, 160, v{rr}")
                A(f"v_lshl_add_u32 v{rr}, v18, 3, v{rr}")
                A(f"v_add_u32 v{rr}, {F.KVW}, v{rr}")
        if i in (9, 10, 11):
            u = i - 9
            sk = A.newlabel("noT2")
            A(f"s_add_u32 s39, s{F.S_RB}, {32*u}")
            A("s_cmp_ge_u32 s39, 68")
            A(f"s_cbranch_scc1 {sk}")
            A("s_cmp_lt_u32 s39, 20")
            A("s_cselect_b64 vcc, -1, 0")
            A("s_movk_i32 s40, 640")
            A("s_cselect_b32 s40, s40, 1280")
            A("v_cndmask_b32 v21, v20, v19, vcc")
            A("v_add_u32 v22, s40, v21")
            for nt in range(5):
                A(f"ds_read_b64_tr_b16 {vr(32 + 4*nt, 2)}, v21 offset:{5120*u + 32*nt}")
                A(f"ds_read_b64_tr_b16 {vr(34 + 4*nt, 2)}, v22 offset:{5120*u + 32*nt}")
            A(f"s_mul_i32 s40, s{F.S_CG}, 68")
            A("s_add_u32 s39, s39, s40")
            A("s_mul_i32 s39, s39, 5120")
            A(f"s_add_u32 s39, s39, {F.WS_W2T}")
            A("s_add_u32 s40, s39, 4096")
            A("s_waitcnt lgkmcnt(0)")
            for nt in range(4):
                A(f"buffer_store_dwordx4 {vr(32 + 4*nt, 4)}, v2, s[24:27], s39 offen offset:{1024*nt} sc1")
            A(f"buffer_store_dwordx4 {vr(48, 4)}, v2, s[24:27], s40 offen sc1")
            A.label(sk)
        if i == 15:
            def setup(j):
                A(f"v_add_u32 v252, {64*j}, v1")
                A("v_lshrrev_b32 v255, 2, v252")
                A("v_and_b32 v252, 3, v252")
                A("v_lshl_add_u32 v252, v255, 3, v252")
                A("v_lshlrev_b32 v252, 7, v252")
                A(f"v_add_u32 v252, {F.FLG_KV}, v252")
            F.poll_flags(A, setup, 2, name)
        if i in KV_SCHED:
            kv_pieces(A, KV_SCHED[i], 0)
    after_loop_L(A, name, 0)

def loader(A, name):
    W = F.S_W
    isq = A.newlabel("isq"); dn = A.newlabel("setup_done")
    A(f"s_cmp_eq_u32 s{W}, 7")
    A(f"s_cbranch_scc1 {isq}")
    for i in range(6):
        A(f"s_sub_u32 s39, s{W}, 5")
        A("s_mul_i32 s39, s39, 384")
        A(f"s_add_u32 s39, s39, {64*i}")
        A("v_add_u32 v7, s39, v1")
        F.divmod_lane(A, 7, 24, 768, 8, 9)
        A("v_bfe_u32 v10, v8, 1, 1")
        A("v_lshlrev_b32 v10, 2, v10")
        A("v_xor_b32 v9, v9, v10")
        A("v_mul_u32_u24 v8, 3072, v8")
        A(f"v_lshl_add_u32 v{40+i}, v9, 4, v8")
    for j in range(4):
        A(f"s_mov_b32 s{28+j}, s{16+j}")
    A(f"s_mul_i32 s46, s{F.S_CG}, 384")
    A("s_mov_b32 s47, 98304")
    A(f"s_sub_u32 s48, s{W}, 5")
    A("s_mul_i32 s48, s48, 6144")
    A(f"s_add_u32 s48, s48, {F.STG0}")
    A(f"s_branch {dn}")
    A.label(isq)
    for i in range(6):
        A(f"v_add_u32 v7, {64*i}, v1")
        F.divmod_lane(A, 7, 12, 384, 8, 9)
        A("v_mul_u32_u24 v8, 1280, v8")
        A(f"v_lshl_add_u32 v{40+i}, v9, 4, v8")
        A("v_cmp_lt_u32 vcc, 9, v9")
        A(f"v_mov_b32 v10, {F.BIG}")
        A("s_nop 0")
        A(f"v_cndmask_b32 v{40+i}, v{40+i}, v10, vcc")
    for j in range(4):
        A(f"s_mov_b32 s{28+j}, s{12+j}")
    A(f"s_mul_i32 s46, s{F.S_CG}, 160")
    A("s_mov_b32 s47, 40960")
    A(f"s_mov_b32 s48, {F.STG0 + F.R_WQ}")
    A.label(dn)
    def dma(stage):
        for i in range(6):
            A(f"s_add_u32 m0, s48, {stage*F.STG + 1024*i}")
            A("s_nop 0")
            A(f"buffer_load_dwordx4 v{40+i}, s[28:31], s46 offen lds")
        A("s_add_u32 s46, s46, s47")
    for st in range(3):
        dma(st)
    A("s_waitcnt vmcnt(18)")
    F.layernorm(A)
    A("s_waitcnt vmcnt(12) lgkmcnt(0)")
    trace(A, 250)
    A("s_barrier")
    trace(A, 250)
    nk = A.newlabel("nokv")
    A("s_cmp_eq_u32 s77, 0")
    A(f"s_cbranch_scc1 {nk}")
    kv_partial(A)
    A.label(nk)
    for i in range(20):
        A(f"; iter {i}")
        A("__WAIT__%d" % i)
        trace(A, 250)
        A("s_barrier")
        if i == 0:
            sk = A.newlabel("nopart")
            A("s_cmp_eq_u32 s77, 0")
            A(f"s_cbranch_scc1 {sk}")
            A(f"s_sub_u32 s39, s{W}, 5")
            A("s_lshl_b32 s39, s39, 12")
            A(f"s_add_u32 s39, s39, {F.KVW}")
            A("v_add_u32 v16, s39, v2")
            A("s_nop 7")
            A("s_nop 7")
            for j in range(4):
                A(f"ds_write_b128 v16, {vr(64 + 4*j, 4)} offset:{1024*j}")
            A.label(sk)
        if i + 3 <= 19:
            dma(i % 3)
        if i == 0:
            A("s_waitcnt lgkmcnt(0)")
        if i == 3:
            A(f"v_mov_b32 v16, {F.SPARE}")
            A("ds_read_b32 v17, v16")
            A("s_waitcnt lgkmcnt(0)")
            A(f"v_readfirstlane_b32 s{F.S_NONCE}, v17")
        if i in KV_SCHED:
            done = A.newlabel("kvd")
            for l in (1, 2, 3):
                nx = A.newlabel("kvn")
                A(f"s_cmp_eq_u32 s{W}, {4+l}")
                A(f"s_cbranch_scc0 {nx}")
                kv_pieces(A, KV_SCHED[i], l)
                A(f"s_branch {done}")
                A.label(nx)
            A.label(done)
    after_loop_L(A, name, None)

def npieces(i, l):
    return len([1 for idx, q in enumerate(KV_SCHED[i]) if idx % 4 == l])

def fix_waits(text):
    out = []
    for ln in text.split("\n"):
        s = ln.strip()
        if s.startswith("__WAIT__"):
            i = int(s[8:])
            if i + 1 > 19:
                continue
            n = 0
            if i + 2 <= 19: n += 6
            for it in (i - 2, i - 1):
                if it in KV_SCHED:
                    n += min(npieces(it, l) for l in (1, 2, 3))
            out.append(f"    s_waitcnt vmcnt({min(n, 63)})")
        else:
            out.append(ln)
    return "\n".join(out)

def after_loop_L(A, name, l):
    W = F.S_W
    nA = min(len([1 for idx, q in enumerate(KV_SCHED[19]) if idx % 4 == ll and q >= 80]) for ll in range(4))
    A(f"s_waitcnt vmcnt({nA})")
    trace(A, 250)
    A("s_barrier")
    A("s_waitcnt vmcnt(0)")
    trace(A, 250)
    A("s_barrier")
    trace(A, 250)
    if l == 0:
        F.publish(A, F.FLG_P1)
    A("s_setprio 3")
    def setup(j):
        A(f"s_lshl_b32 s39, s{F.S_RB}, 3")
        A("v_add_u32 v252, s39, v1")
        A("v_subrev_u32 v255, 8, v1")
        A("v_lshlrev_b32 v255, 3, v255")
        A(f"v_add_u32 v255, s{F.S_CG}, v255")
        A("v_cmp_gt_u32 vcc, 8, v1")
        A("s_nop 1")
        A("v_cndmask_b32 v252, v255, v252, vcc")
        A("v_mov_b32 v255, s39")
        A("v_cmp_gt_u32 vcc, 40, v1")
        A("s_nop 1")
        A("v_cndmask_b32 v252, v255, v252, vcc")
        A("v_lshlrev_b32 v252, 7, v252")
        A(f"v_add_u32 v252, {F.FLG_P1}, v252")
    F.poll_flags(A, setup, 1, name)
    trace(A, 250)
    A(f"s_sub_u32 s42, s{W}, 4")
    A(f"s_mul_i32 s54, s{F.S_CG}, 68")
    A("s_add_u32 s54, s54, s42")
    A("s_add_u32 s54, s54, 20")
    A("s_mul_i32 s54, s54, 5120")
    A(f"s_add_u32 s54, s54, {F.WS_W2T}")
    for j in range(4):
        A(f"s_lshl_b32 s39, s{F.S_RB}, 2")
        A(f"s_add_u32 s39, s39, {j}")
        A("s_mul_i32 s39, s39, 48")
        A("s_add_u32 s39, s39, s42")
        A("s_lshl_b32 s39, s39, 10")
        A(f"s_add_u32 s{44+j}, s39, {F.WS_H}")
    def loads(i):
        b = FBUF[i % 4]
        A("s_add_u32 s55, s54, 4096")
        for nt in range(4):
            A(f"buffer_load_dwordx4 {vr(b + 4*nt, 4)}, v2, s[24:27], s54 offen offset:{1024*nt} sc1")
        A(f"buffer_load_dwordx4 {vr(b + 16, 4)}, v2, s[24:27], s55 offen sc1")
        for j in range(4):
            A(f"buffer_load_dwordx4 {vr(b + 20 + 4*j, 4)}, v2, s[24:27], s{44+j} offen sc1")
        A(f"s_add_u32 s54, s54, {4*5120}")
        for j in range(4):
            A(f"s_add_u32 s{44+j}, s{44+j}, 4096")
    N = 12
    for i in range(3):
        loads(i)
    for r in range(80):
        A(f"v_mov_b32 v{FACC + r}, 0")
    for i in range(N):
        if i + 3 < N:
            loads(i + 3)
        later = min(N - 1, i + 3) - i
        A(f"s_waitcnt vmcnt({9*later})")
        trace(A, 250)
        b = FBUF[i % 4]
        for j in range(4):
            for nt in range(5):
                a = FACC + 20*j + 4*nt
                A(f"v_mfma_f32_16x16x32_bf16 {vr(a,4)}, {vr(b + 4*nt, 4)}, {vr(b + 20 + 4*j, 4)}, {vr(a,4)}")
    A("s_setprio 0")
    trace(A, 250)
    trace_dump(A, 250, 0, 252)
    A("s_barrier")
    F.tail_common(A, name, is_L=True, l0=(l == 0))
```

```python
import sys
import asmlib
asmlib.STAMPS = False
asmlib.TRACE = (len(sys.argv) > 2 and sys.argv[2] in ('trace', 'rt'))
asmlib.RT = (len(sys.argv) > 2 and sys.argv[2] == 'rt')
from asmlib import *
import fused, fused_l
ref = open("parallel_sum__grouped_kv_mqa__dense_activation_squared_relu__prompt.s.ref").read()
hdr = []
for ln in ref.split("\n"):
    if ln.startswith("; Override") or ln.startswith("; grid=") or "@launch" in ln or not ln.startswith(";"):
        if not ln.startswith(";"): break
        continue
    hdr.append(ln)
n = "parallel_sum__grouped_kv_mqa__dense_activation_squared_relu__prompt_kernel"
out = "\n".join(hdr) + "\n"
out += f"; @launch grid=(256,1,1) block=(512,1,1) lds=163840\n"
out += '.amdgcn_target "amdgcn-amd-amdhsa--gfx950"\n.text\n'
out += f".globl {n}\n.p2align 8\n.type {n},@function\n" + fused_l.fix_waits(fused.gen(n)) + "\n"
out += '.section .rodata,"a"\n.p2align 6\n' + kd(n, 256)
dst = sys.argv[1] if len(sys.argv) > 1 else "parallel_sum__grouped_kv_mqa__dense_activation_squared_relu__prompt.s"
open(dst, "w").write(out)
print("wrote", dst, len(out))
```

```python
from asmlib import *
import asmlib, struct

WS_KV = 0
WS_H = 163840
WS_W2T = WS_H + 6291456
WS_O = WS_W2T + 2785280
WS_FLG = WS_O + 2621440
FLG_KV = WS_FLG
FLG_H = WS_FLG + 4096
FLG_T = WS_FLG + 16384
FLG_O = WS_FLG + 32768
WS_TR = WS_FLG + 98304
WS_SIZE = WS_TR + 256*8*2*256
asmlib.TR_BASE = WS_TR

QSCALE = (20 ** -0.5) * 1.4426950408889634
OFF = 88.0
VMASK = 0x000FFFFF
BIG = 0x40000000

def magic(d, maxp):
    for sh in range(8, 24):
        m = (1 << sh) // d + 1
        if m * maxp < (1 << 32) and m < (1 << 24) and all((p * m) >> sh == p // d for p in range(maxp + 1)):
            return m, sh
    raise Exception("no magic")
def f2u(x):
    return struct.unpack("<I", struct.pack("<f", x))[0]

STG0 = 81920
STG = 18432
R_WQ = 12288
KVW = STG0 + 3 * STG
SPARE = KVW + 25600
SPIN_LIMIT = 20000

S_RB, S_CG, S_W = 36, 37, 38
S_NONCE = 76
S_DUTY = 77
S_KVT = 79

def divmod_lane(A, src, d, maxp, q, r, tmp=None):
    m, s = magic(d, maxp)
    A(f"v_mul_u32_u24 v{q}, {m}, v{src}")
    A(f"v_lshrrev_b32 v{q}, {s}, v{q}")
    A(f"v_mul_u32_u24 v{r}, {d}, v{q}")
    A(f"v_sub_u32 v{r}, v{src}, v{r}")

def poll_flags(A, vaddr_setup, nloads, name):
    lp = A.newlabel("poll"); ok = A.newlabel("pollok")
    A("s_mov_b32 s59, 0")
    A.label(lp)
    for i in range(nloads):
        vaddr_setup(i)
        A(f"buffer_load_dword v{253+i}, v252, s[24:27], 0 offen sc1")
    A("s_waitcnt vmcnt(0)")
    A(f"v_xor_b32 v253, s{S_NONCE}, v253")
    for i in range(1, nloads):
        A(f"v_xor_b32 v{253+i}, s{S_NONCE}, v{253+i}")
        A(f"v_or_b32 v253, v253, v{253+i}")
    A("v_cmp_ne_u32 vcc, 0, v253")
    A("s_add_u32 s59, s59, 1")
    A("s_nop 3")
    A("s_cmp_eq_u64 vcc, 0")
    A(f"s_cbranch_scc1 {ok}")
    A(f"s_cmp_gt_u32 s59, {SPIN_LIMIT}")
    A(f"s_cbranch_scc1 {ok}")
    A("s_sleep 4")
    A(f"s_branch {lp}")
    A.label(ok)

def publish(A, kind):
    if kind == "KV":
        A(f"s_lshl_b32 s58, s{S_RB}, 2")
        A(f"s_add_u32 s58, s58, s{S_KVT}")
        A("s_lshl_b32 s58, s58, 2")
        A(f"s_add_u32 s58, s58, {FLG_KV}")
    elif kind in ("H", "O"):
        A(f"s_lshl_b32 s58, s{S_RB}, 6")
        A(f"s_add_u32 s58, s58, s{S_CG}")
        A("s_lshl_b32 s58, s58, 2")
        A(f"s_add_u32 s58, s58, {FLG_H if kind == 'H' else FLG_O}")
    else:
        A(f"s_lshl_b32 s58, s{S_CG}, 6")
        A(f"s_add_u32 s58, s58, s{S_RB}")
        A("s_lshl_b32 s58, s58, 2")
        A(f"s_add_u32 s58, s58, {FLG_T}")
    A("v_mov_b32 v252, 0")
    A(f"v_mov_b32 v253, s{S_NONCE}")
    A("s_mov_b64 exec, 1")
    A("buffer_store_dword v253, v252, s[24:27], s58 offen sc1")
    A("s_mov_b64 exec, -1")

def gen(name):
    A = Asm()
    A.label(name)
    A("s_cmp_ge_u32 s2, 256")
    A(f"s_cbranch_scc1 L_{name}_end")
    A("s_load_dwordx4 s[44:47], s[0:1], 0")
    A("s_load_dwordx4 s[48:51], s[0:1], 16")
    A("s_load_dwordx2 s[52:53], s[0:1], 32")
    A("s_load_dwordx4 s[56:59], s[0:1], 48")
    A("s_load_dwordx4 s[60:63], s[0:1], 64")
    A("s_load_dwordx4 s[64:67], s[0:1], 80")
    A("s_load_dwordx2 s[68:69], s[0:1], 96")
    A("s_and_b32 s39, s2, 7")
    A("s_lshr_b32 s40, s2, 3")
    A(f"s_and_b32 s{S_RB}, s39, 3")
    A(f"s_lshl_b32 s{S_RB}, s{S_RB}, 3")
    A("s_and_b32 s41, s40, 7")
    A(f"s_add_u32 s{S_RB}, s{S_RB}, s41")
    A("s_lshr_b32 s41, s39, 2")
    A(f"s_lshl_b32 s{S_CG}, s41, 2")
    A(f"s_lshr_b32 s{S_KVT}, s40, 3")
    A(f"s_add_u32 s{S_CG}, s{S_CG}, s{S_KVT}")
    A(f"s_xor_b32 s{S_DUTY}, s41, 1")
    A("v_lshrrev_b32 v2, 6, v0")
    A("v_and_b32 v1, 63, v0")
    A(f"v_readfirstlane_b32 s{S_W}, v2")
    A("v_lshrrev_b32 v3, 4, v1")
    A("v_and_b32 v4, 15, v1")
    A(f"s_lshl_b32 s39, s{S_W}, 3")
    A("v_add_u32 v5, s39, v3")
    A("v_mul_u32_u24 v6, 1280, v5")
    A("v_lshl_add_u32 v6, v4, 4, v6")
    A("s_waitcnt lgkmcnt(0)")
    trace_init(A, 250)
    trace(A, 250)
    srd(A, 8, 44, 45, 2621440)
    XR = 80
    A(f"s_mul_i32 s39, s{S_RB}, 81920")
    A("s_add_u32 s40, s39, 5120")
    for p in range(2):
        for i in range(5):
            A(f"buffer_load_dwordx4 {vr(XR + 20*p + 4*i, 4)}, v6, s[8:11], s{39+p} offen offset:{256*i}")
    srd(A, 12, 46, 47, 819200)
    srd(A, 16, 56, 57, 1966080)
    srd(A, 24, 68, 69, WS_SIZE)
    srd(A, 32, 58, 59, 3072)
    A(f"s_cmp_lt_u32 s{S_KVT}, 2")
    A("s_cselect_b32 s20, s48, s50")
    A("s_cselect_b32 s21, s49, s51")
    A("s_mov_b32 s22, 25600")
    A("s_mov_b32 s23, 0x00020000")
    nd = A.newlabel("nokvw")
    A(f"s_cmp_eq_u32 s{S_DUTY}, 0")
    A(f"s_cbranch_scc1 {nd}")
    A("v_lshlrev_b32 v2, 4, v1")
    A(f"s_lshl_b32 s39, s{S_W}, 10")
    for i in range(4):
        A(f"s_add_u32 m0, s39, {KVW + 8192*i}")
        A(f"s_add_u32 s40, s39, {8192*i}")
        A(f"buffer_load_dwordx4 v2, s[20:23], s40 offen lds")
    A.label(nd)
    A(f"s_cmp_ge_u32 s{S_W}, 4")
    A(f"s_cbranch_scc1 L_{name}_roleL")
    role_C(A, name)
    A.label(f"L_{name}_roleL")
    role_L(A, name)
    A.label(f"L_{name}_end")
    A("s_endpgm")
    return A.text()

XR = 80
def ln_setup(A):
    A("v_mov_b32 v144, 0x3f803f80")
    for r in range(146, 154):
        A(f"v_mov_b32 v{r}, 0")
    for p in range(2):
        A(f"v_add_u32 v7, {4*p}, v5")
        A("v_and_b32 v8, 15, v7")
        A("v_xor_b32 v8, v8, v4")
        A("v_mul_u32_u24 v7, 1280, v7")
        A(f"v_lshl_add_u32 v{154+p}, v8, 4, v7")

def layernorm(A):
    for p in range(2):
        S, Qs = 146 + 4*p, 148 + 4*p
        for i in range(20):
            x = XR + 20*p + i
            A(f"v_dot2_f32_bf16 v{S + (i&1)}, v{x}, v144, v{S + (i&1)}")
            A(f"v_dot2_f32_bf16 v{Qs + (i&1)}, v{x}, v{x}, v{Qs + (i&1)}")
    A(f"s_mov_b32 s39, {f2u(1.0 / 640)}")
    A(f"s_mov_b32 s40, {f2u(1e-5)}")
    A("s_nop 1")
    for p in range(2):
        S, Qs = 146 + 4*p, 148 + 4*p
        A(f"v_add_f32 v{S}, v{S}, v{S+1}")
        A(f"v_add_f32 v{Qs}, v{Qs}, v{Qs+1}")
    for n, sh in enumerate((8, 4, 2, 1)):
        if n == 0: A("s_nop 0")
        for p in range(2):
            S, Qs = 146 + 4*p, 148 + 4*p
            A(f"v_add_f32_dpp v{S}, v{S}, v{S} row_ror:{sh} row_mask:0xf bank_mask:0xf")
            A(f"v_add_f32_dpp v{Qs}, v{Qs}, v{Qs} row_ror:{sh} row_mask:0xf bank_mask:0xf")
    for p in range(2):
        S, Qs = 146 + 4*p, 148 + 4*p
        A(f"v_mul_f32 v{S}, s39, v{S}")
        A(f"v_mul_f32 v{Qs}, s39, v{Qs}")
    for p in range(2):
        S, Qs = 146 + 4*p, 148 + 4*p
        A(f"v_fma_f32 v{Qs}, -v{S}, v{S}, v{Qs}")
    for p in range(2):
        S, Qs = 146 + 4*p, 148 + 4*p
        A(f"v_max_f32 v{Qs}, 0, v{Qs}")
    for p in range(2):
        S, Qs = 146 + 4*p, 148 + 4*p
        A(f"v_add_f32 v{Qs}, s40, v{Qs}")
    for p in range(2):
        S, Qs = 146 + 4*p, 148 + 4*p
        A(f"v_rsq_f32 v{Qs}, v{Qs}")
    A("s_nop 0")
    for p in range(2):
        S, Qs = 146 + 4*p, 148 + 4*p
        A(f"v_mul_f32 v{Qs+1}, -v{S}, v{Qs}")
    n = 0
    for p in range(2):
        P = 148 + 4*p
        for i in range(5):
            for j in range(4):
                x = XR + 20*p + 4*i + j
                t = 156 + 2*(n & 1); n += 1
                A(f"v_lshlrev_b32 v{t}, 16, v{x}")
                A(f"v_and_b32 v{t+1}, 0xffff0000, v{x}")
                A(f"v_pk_fma_f32 v[{t}:{t+1}], v[{t}:{t+1}], v[{P}:{P+1}], v[{P}:{P+1}] op_sel:[0,0,1] op_sel_hi:[1,0,1]")
                A(f"v_cvt_pk_bf16_f32 v{x}, v{t}, v{t+1}")
            A(f"ds_write_b128 v{154+p}, {vr(XR + 20*p + 4*i, 4)} offset:{256*i}")

def xaddr(A, dst0, tmp=16):
    A(f"v_and_b32 v{tmp}, 31, v1")
    A(f"v_lshrrev_b32 v{tmp+1}, 5, v1")
    A(f"v_and_b32 v{tmp+2}, 15, v{tmp}")
    A(f"v_xor_b32 v{tmp+2}, v{tmp+2}, v{tmp+1}")
    A(f"v_mul_u32_u24 v{tmp+3}, 1280, v{tmp}")
    A(f"v_lshl_add_u32 v{tmp+3}, v{tmp+2}, 4, v{tmp+3}")
    for k in range(8):
        A(f"v_xor_b32 v{dst0+k}, {k << 5}, v{tmp+3}")

def trlane(A, k, colb, tmp):
    A(f"v_lshrrev_b32 v{k}, 5, v1")
    A(f"v_bfe_u32 v{tmp}, v1, 2, 2")
    A(f"v_lshl_add_u32 v{k}, v{k}, 3, v{tmp}")
    A(f"v_bfe_u32 v{colb}, v1, 4, 1")
    A(f"v_lshlrev_b32 v{colb}, 5, v{colb}")
    A(f"v_and_b32 v{tmp+1}, 3, v1")
    A(f"v_lshl_add_u32 v{colb}, v{tmp+1}, 3, v{colb}")

from fused_c import role_C
from fused_l import role_L

def tail_common(A, name, is_L, l0=False):
    W = S_W
    FACC = 8
    PART = 102400
    TR = 100
    trace_init(A, TR)
    trace(A, TR)
    A("v_lshlrev_b32 v2, 4, v1")
    A(f"s_and_b32 s42, s{W}, 3")
    if not is_L:
        A(f"s_mul_i32 s39, s{S_CG}, 348160")
        A(f"s_add_u32 s39, s39, {WS_W2T}")
        A(f"s_lshl_b32 s40, s{W}, 10")
        A("s_add_u32 s39, s39, s40")
        for i in range(25):
            A(f"s_add_u32 m0, s40, {4096*i}")
            A(f"s_add_u32 s41, s39, {4096*i}")
            A(f"buffer_load_dwordx4 v2, s[24:27], s41 offen sc1 lds")
        for r in range(20):
            A(f"v_mov_b32 v{112 + r}, 0")
        A("s_barrier")
        A("s_waitcnt vmcnt(0)")
    else:
        srd(A, 12, 62, 63, 1280)
        srd(A, 16, 64, 65, 2621440)
        A("v_and_b32 v3, 15, v1")
        A("v_lshrrev_b32 v4, 4, v1")
        A("v_mul_u32_u24 v5, 1280, v3")
        A("v_lshl_add_u32 v5, v4, 3, v5")
        A("v_lshlrev_b32 v6, 3, v4")
        A(f"s_lshl_b32 s39, s{S_RB}, 2")
        A("s_add_u32 s39, s39, s42")
        A("s_mul_i32 s39, s39, 20480")
        A(f"s_mul_i32 s40, s{S_CG}, 160")
        A("s_add_u32 s52, s39, s40")
        A("s_mov_b32 s53, s40")
        for nt in range(5):
            A(f"buffer_load_dwordx2 {vr(232 + 2*nt, 2)}, v5, s[8:11], s52 offen offset:{32*nt}")
        for nt in range(5):
            A(f"buffer_load_dwordx2 {vr(242 + 2*nt, 2)}, v6, s[12:15], s53 offen offset:{32*nt}")
        A("s_nop 7")
        for dj in range(1, 4):
            A(f"s_add_u32 s39, s42, {dj}")
            A("s_and_b32 s39, s39, 3")
            A("s_mul_i32 s40, s39, 15360")
            A(f"s_add_u32 s40, s40, {PART + (3 - dj) * 5120}")
            A("v_add_u32 v7, s40, v2")
            done = A.newlabel("wdone")
            for j in range(4):
                nxt = A.newlabel("wn")
                A(f"s_cmp_eq_u32 s39, {j}")
                A(f"s_cbranch_scc0 {nxt}")
                for nt in range(5):
                    A(f"ds_write_b128 v7, {vr(FACC + 20*j + 4*nt, 4)} offset:{1024*nt}")
                A(f"s_branch {done}")
                A.label(nxt)
            A.label(done)
        done = A.newlabel("mdone")
        for j in range(4):
            nxt = A.newlabel("mn")
            A(f"s_cmp_eq_u32 s42, {j}")
            A(f"s_cbranch_scc0 {nxt}")
            for r in range(20):
                A(f"v_mov_b32 v{112 + r}, v{FACC + 20*j + r}")
            A(f"s_branch {done}")
            A.label(nxt)
        A.label(done)
        A("s_waitcnt lgkmcnt(0)")
        trace(A, TR)
        A("s_barrier")
        A("s_mul_i32 s40, s42, 15360")
        A(f"s_add_u32 s40, s40, {PART}")
        A("v_add_u32 v7, s40, v2")
        for idx in range(3):
            for nt in range(5):
                A(f"ds_read_b128 {vr(172 + 20*idx + 4*nt, 4)}, v7 offset:{5120*idx + 1024*nt}")
        A("s_waitcnt vmcnt(0) lgkmcnt(0)")
        for r in range(20):
            A(f"v_add_f32 v{112+r}, v{112+r}, v{172+r}")
            A(f"v_add_f32 v{192+r}, v{192+r}, v{212+r}")
        for r in range(20):
            A(f"v_add_f32 v{112+r}, v{112+r}, v{192+r}")
        for nt in range(5):
            for hw in range(2):
                xr = 232 + 2*nt + hw; br = 242 + 2*nt + hw; a = 112 + 4*nt + 2*hw
                A(f"v_lshlrev_b32 v8, 16, v{xr}")
                A(f"v_and_b32 v9, 0xffff0000, v{xr}")
                A(f"v_lshlrev_b32 v10, 16, v{br}")
                A(f"v_and_b32 v11, 0xffff0000, v{br}")
                A(f"v_add_f32 v{a}, v{a}, v8")
                A(f"v_add_f32 v{a+1}, v{a+1}, v9")
                A(f"v_add_f32 v{a}, v{a}, v10")
                A(f"v_add_f32 v{a+1}, v{a+1}, v11")
        trace(A, TR)
        if l0:
            def setup(j):
                A(f"s_lshl_b32 s39, s{S_RB}, 8")
                A(f"s_add_u32 s39, s39, {FLG_O}")
                A("v_and_b32 v252, 7, v1")
                A("v_lshlrev_b32 v252, 2, v252")
                A("v_add_u32 v252, s39, v252")
            poll_flags(A, setup, 1, name)
    trace(A, TR)
    A(f"s_lshl_b32 s39, s{S_RB}, 2")
    A("s_add_u32 s39, s39, s42")
    A("s_mul_i32 s39, s39, 20")
    if is_L: A("s_add_u32 s39, s39, 10")
    A("s_lshl_b32 s39, s39, 10")
    A(f"s_add_u32 s39, s39, {WS_O}")
    base = 51200 if is_L else 0
    A(f"v_add_u32 v12, {base}, v2")
    A("s_barrier")
    trace(A, TR)
    for k in range(10):
        if k % 4 == 0 and k:
            A("s_add_u32 s39, s39, 4096")
        A(f"buffer_load_dwordx4 {vr(132 + 4*k, 4)}, v2, s[24:27], s39 offen offset:{1024*(k%4)} sc1")
    WB = (172, 192)
    def wreads(k):
        for nt in range(5):
            A(f"ds_read_b128 {vr(WB[k%2] + 4*nt, 4)}, v12 offset:{(k*5 + nt)*1024}")
    wreads(0)
    for k in range(10):
        if k + 1 < 10:
            wreads(k + 1)
        A(f"s_waitcnt vmcnt({9-k}) lgkmcnt({5 if k + 1 < 10 else 0})")
        for nt in range(5):
            a = 112 + 4*nt
            A(f"v_mfma_f32_16x16x32_bf16 {vr(a,4)}, {vr(WB[k%2] + 4*nt, 4)}, {vr(132 + 4*k, 4)}, {vr(a,4)}")
    A("s_mul_i32 s40, s42, 5120")
    A(f"s_add_u32 s40, s40, {PART}")
    A("v_add_u32 v7, s40, v2")
    A("s_nop 7")
    trace(A, TR)
    if not is_L:
        for nt in range(5):
            A(f"ds_write_b128 v7, {vr(112 + 4*nt, 4)} offset:{1024*nt}")
        A("s_waitcnt lgkmcnt(0)")
        A("s_barrier")
        trace(A, TR)
        trace_dump(A, TR, 1, 8)
        A("s_endpgm")
    else:
        A("s_barrier")
        for nt in range(5):
            A(f"ds_read_b128 {vr(172 + 4*nt, 4)}, v7 offset:{1024*nt}")
        A("s_waitcnt lgkmcnt(0)")
        for r in range(20):
            A(f"v_add_f32 v{112+r}, v{112+r}, v{172+r}")
        for nt in range(5):
            A(f"v_cvt_pk_bf16_f32 v{192 + 2*nt}, v{112 + 4*nt}, v{113 + 4*nt}")
            A(f"v_cvt_pk_bf16_f32 v{193 + 2*nt}, v{114 + 4*nt}, v{115 + 4*nt}")
            A(f"buffer_store_dwordx2 {vr(192 + 2*nt, 2)}, v5, s[16:19], s52 offen offset:{32*nt}")
        trace(A, TR)
        if asmlib.TRACE:
            A("s_waitcnt vmcnt(0)")
            trace(A, TR)
            trace_dump(A, TR, 1, 8)
        A("s_endpgm")


def wait_x(A, later):
    l1 = A.newlabel("wx1"); l2 = A.newlabel("wx2")
    A(f"s_cmp_eq_u32 s{S_DUTY}, 0")
    A(f"s_cbranch_scc1 {l1}")
    A(f"s_waitcnt vmcnt({later + 4})")
    A(f"s_branch {l2}")
    A.label(l1)
    A(f"s_waitcnt vmcnt({later})")
    A.label(l2)
FFN_PRIO = 0
N_D2 = 3
L_PRIO_A = 2
TOUCH = 1
N_TAIL = 6
```

```python
from asmlib import *
import fused as F

ACCQ, ACCH, BIAS = 128, 160, 208
SETS = (32, 80)
SA, SB, PA, PB, OA, OB, CA, CB = 32, 48, 64, 72, 80, 96, 112, 128
K1, K2, V1, V2 = 144, 148, 152, 156
Q1A, Q1B, Q2A, Q2B = 208, 212, 216, 218
MA, MB = 5, 6

def qk(S, Q1, Q2, C):
    c = "0" if C is None else vr(C, 16)
    return [f"v_mfma_f32_32x32x16_bf16 {vr(S,16)}, {vr(K1,4)}, {vr(Q1,4)}, {c}",
            f"v_mfma_f32_32x32x8_bf16 {vr(S,16)}, {vr(K2,2)}, {vr(Q2,2)}, {vr(S,16)}"]
def pv(O, P):
    return [f"v_mfma_f32_32x32x16_bf16 {vr(O,16)}, {vr(V1,4)}, {vr(P,4)}, {vr(O,16)}",
            f"v_mfma_f32_32x32x16_bf16 {vr(O,16)}, {vr(V2,4)}, {vr(P+4,4)}, {vr(O,16)}"]
def readK1(A, off): A(f"ds_read_b128 {vr(K1,4)}, v2 offset:{off}")
def readK2(A, off): A(f"ds_read_b64 {vr(K2,2)}, v3 offset:{off}")
def readV(A, off):
    A("s_mov_b64 exec, s[60:61]")
    A(f"ds_read_b128 {vr(V1,4)}, v4 offset:{off}")
    A(f"ds_read_b128 {vr(V2,4)}, v4 offset:{off + 640}")
    A("s_mov_b64 exec, -1")
def half(A, S, P, ms, hooks):
    e = [f"v_exp_f32 v{S+i}, v{S+i}" for i in range(16)]
    c = [f"v_cvt_pk_bf16_f32 v{P+i}, v{S+2*i}, v{S+2*i+1}" for i in range(8)]
    def M(i):
        if ("pre", i) in hooks: hooks[("pre", i)]()
        A(ms[i])
        if i in hooks: hooks[i]()
    M(0)
    for x in e[0:4]: A(x)
    M(1)
    for x in e[4:8]: A(x)
    A(c[0]); A(c[1])
    M(2)
    for x in e[8:12]: A(x)
    A(c[2]); A(c[3])
    M(3)
    for x in e[12:16]: A(x)
    for x in c[4:8]: A(x)
def rowmax16(A, S, dst, first):
    if first:
        A(f"v_max3_f32 v{dst}, v{S}, v{S+1}, v{S+2}")
        i = 3
    else:
        i = 0
    while i + 1 < 16:
        A(f"v_max3_f32 v{dst}, v{dst}, v{S+i}, v{S+i+1}")
        i += 2
    if i < 16:
        A(f"v_max_f32 v{dst}, v{dst}, v{S+i}")
def crossmax(A, M):
    A(f"v_mov_b32 v7, v{M}")
    A("s_nop 1")
    A(f"v_permlane32_swap_b32 v7, v{M}")
    A("s_nop 1")
    A(f"v_max_f32 v{M}, v{M}, v7")
def kv_addr_init(A):
    A("v_lshlrev_b32 v2, 4, v1")
    A(f"v_add_u32 v2, {F.STG0}, v2")
    A("v_and_b32 v7, 31, v1")
    A("v_lshlrev_b32 v3, 3, v7")
    A(f"v_add_u32 v3, {F.STG0 + 1024}, v3")
    A("v_lshrrev_b32 v8, 5, v1")
    A("v_mul_u32_u24 v4, 320, v8")
    A("v_lshl_add_u32 v4, v7, 4, v4")
    A(f"v_add_u32 v4, {F.STG0 + 40960}, v4")

def role_C(A, name):
    W = F.S_W
    A(f"s_mul_i32 s39, s{F.S_CG}, 384")
    A(f"s_lshr_b32 s40, s{W}, 1")
    A("s_mul_i32 s40, s40, 192")
    A("s_add_u32 s39, s39, s40")
    A("v_lshrrev_b32 v7, 5, v1")
    A("v_lshlrev_b32 v7, 3, v7")
    for i in range(3):
        for q in range(4):
            A(f"buffer_load_dwordx2 {vr(BIAS + 8*i + 2*q, 2)}, v7, s[32:35], s39 offen offset:{64*i + 16*q}")
    trace(A, 250)
    F.ln_setup(A)
    F.xaddr(A, 2)
    A(f"s_and_b32 s41, s{W}, 1")
    A("s_mul_i32 s42, s41, 40960")
    A("s_sub_u32 s43, 40960, s42")
    for k in range(8):
        A(f"v_add_u32 v{18+k}, s43, v{2+k}")
    for k in range(8):
        A(f"v_add_u32 v{2+k}, s42, v{2+k}")
    F.trlane(A, 26, 27, 28)
    A("v_mul_u32_u24 v10, 192, v26")
    A("v_add_u32 v10, v10, v27")
    A(f"s_mul_i32 s39, s{W}, 40")
    A(f"s_add_u32 s39, s39, {F.STG0 + F.R_WQ}")
    A("v_add_u32 v10, s39, v10")
    A("v_lshrrev_b32 v29, 1, v28")
    A(f"s_lshr_b32 s40, s{W}, 1")
    A("s_mul_i32 s40, s40, 3")
    for i in range(3):
        A(f"s_add_u32 s39, s40, {i}")
        A(f"v_xor_b32 v30, s39, v29")
        A(f"v_mul_u32_u24 v{11+i}, 384, v26")
        A(f"v_lshl_add_u32 v{11+i}, v30, 6, v{11+i}")
        A(f"v_add_u32 v{11+i}, v{11+i}, v27")
        A(f"v_add_u32 v{11+i}, {F.STG0}, v{11+i}")
    F.wait_x(A, 12)
    trace(A, 250, 2)
    F.layernorm(A)
    A("s_waitcnt vmcnt(0)")
    for i in range(3):
        for q in range(4):
            a = ACCH + 16*i + 4*q
            b = BIAS + 8*i + 2*q
            A(f"v_lshlrev_b32 v{a}, 16, v{b}")
            A(f"v_and_b32 v{a+1}, 0xffff0000, v{b}")
            A(f"v_lshlrev_b32 v{a+2}, 16, v{b+1}")
            A(f"v_and_b32 v{a+3}, 0xffff0000, v{b+1}")
    for r in range(32):
        A(f"v_mov_b32 v{ACCQ+r}, 0")
    def setstage():
        for i in range(4):
            A(f"v_add_u32 v{26+i}, s44, v{10+i}")
    def reads(cs, st):
        L = []
        b = SETS[st]
        for ks in range(2):
            xa = 2*cs + ks
            L.append(f"ds_read_b128 {vr(b + 8*ks, 4)}, v{2+xa}")
            L.append(f"ds_read_b128 {vr(b + 8*ks + 4, 4)}, v{18+xa}")
            L.append(f"ds_read_b64_tr_b16 {vr(b + 16 + 4*ks, 2)}, v26 offset:{16*ks*192}")
            L.append(f"ds_read_b64_tr_b16 {vr(b + 18 + 4*ks, 2)}, v26 offset:{(16*ks+4)*192}")
            for i in range(3):
                L.append(f"ds_read_b64_tr_b16 {vr(b + 24 + 12*ks + 4*i, 2)}, v{27+i} offset:{16*ks*384}")
                L.append(f"ds_read_b64_tr_b16 {vr(b + 26 + 12*ks + 4*i, 2)}, v{27+i} offset:{(16*ks+4)*384}")
        return L
    def mfmas(st):
        L = []
        b = SETS[st]
        for ks in range(2):
            for i in range(3):
                a = ACCH + 16*i
                L.append(f"v_mfma_f32_32x32x16_bf16 {vr(a,16)}, {vr(b + 24 + 12*ks + 4*i, 4)}, {vr(b + 8*ks, 4)}, {vr(a,16)}")
            for s in range(2):
                a = ACCQ + 16*s
                L.append(f"v_mfma_f32_32x32x16_bf16 {vr(a,16)}, {vr(b + 16 + 4*ks, 4)}, {vr(b + 8*ks + 4*s, 4)}, {vr(a,16)}")
        return L
    A("s_mov_b32 s44, 0")
    setstage()
    A("s_waitcnt lgkmcnt(0)")
    trace(A, 250)
    A("s_barrier")
    trace(A, 250)
    for ln in reads(0, 0): A(ln)
    A("s_mov_b32 s43, 5")
    lp = A.newlabel("gemm1")
    A.label(lp)
    for s in range(4):
        st = s % 2
        A(f"s_add_u32 s44, s44, {F.STG}")
        A(f"s_cmp_eq_u32 s44, {3*F.STG}")
        A("s_cselect_b32 s44, 0, s44")
        A("s_waitcnt lgkmcnt(0)")
        A("s_barrier")
        trace(A, 250, 2)
        setstage()
        if s == 3:
            for k in range(8):
                A(f"v_add_u32 v{2+k}, 256, v{2+k}")
                A(f"v_add_u32 v{18+k}, 256, v{18+k}")
        ms = mfmas(st)
        rd = reads((s + 1) % 4, 1 - st)
        for i, m in enumerate(ms):
            A(m)
            for ln in rd[3*i:3*i+3]: A(ln)
    A("s_sub_u32 s43, s43, 1")
    A("s_cmp_lg_u32 s43, 0")
    A(f"s_cbranch_scc1 {lp}")
    A("s_waitcnt lgkmcnt(0)")
    trace(A, 250)
    A("s_nop 15")
    A("s_nop 3")
    A("v_lshrrev_b32 v17, 5, v1")
    A("v_cmp_eq_u32 s[62:63], 0, v17")
    A(f"s_mov_b32 s40, {F.f2u(F.QSCALE)}")
    for s, (Q1, Q2) in enumerate(((Q1A, Q2A), (Q1B, Q2B))):
        a = ACCQ + 16*s
        for r in range(12):
            A(f"v_mul_f32 v{a+r}, s40, v{a+r}")
        for j in range(4):
            A(f"v_cvt_pk_bf16_f32 v{Q1+j}, v{a+2*j}, v{a+2*j+1}")
        for j in range(2):
            A(f"v_cvt_pk_bf16_f32 v{Q2+j}, v{a+8+2*j}, v{a+9+2*j}")
            A(f"v_cndmask_b32 v{Q2+j}, 0, v{Q2+j}, s[62:63]")
    A("v_and_b32 v16, 31, v1")
    A("v_lshrrev_b32 v18, 4, v16")
    A("v_mul_u32_u24 v18, 49152, v18")
    A("v_and_b32 v19, 15, v16")
    A("v_lshl_add_u32 v19, v17, 4, v19")
    A("v_lshl_add_u32 v18, v19, 4, v18")
    A(f"s_lshl_b32 s39, s{F.S_RB}, 2")
    A(f"s_and_b32 s41, s{W}, 1")
    A("s_lshl_b32 s40, s41, 1")
    A("s_add_u32 s39, s39, s40")
    A("s_mul_i32 s39, s39, 48")
    A(f"s_mul_i32 s40, s{F.S_CG}, 6")
    A("s_add_u32 s39, s39, s40")
    A(f"s_lshr_b32 s40, s{W}, 1")
    A("s_mul_i32 s40, s40, 3")
    A("s_add_u32 s39, s39, s40")
    A("s_lshl_b32 s39, s39, 10")
    A(f"s_add_u32 s39, s39, {F.WS_H}")
    for i in range(3):
        a = ACCH + 16*i
        for r in range(16):
            A(f"v_max_f32 v{a+r}, 0, v{a+r}")
        for r in range(16):
            A(f"v_mul_f32 v{a+r}, v{a+r}, v{a+r}")
        for u in range(2):
            d = 220 + 8*i + 4*u
            for j in range(4):
                A(f"v_cvt_pk_bf16_f32 v{d + j}, v{a + 8*u + 2*j}, v{a + 8*u + 2*j + 1}")
            A(f"buffer_store_dwordx4 {vr(d, 4)}, v18, s[24:27], s39 offen offset:{1024*i + 512*u} sc1")
    kv_addr_init(A)
    A(f"s_mov_b32 s60, {F.VMASK}")
    A(f"s_mov_b32 s61, {F.VMASK}")
    A("v_and_b32 v7, 31, v1")
    A("v_cmp_eq_u32 vcc, 20, v7")
    A("v_mov_b32 v12, 0x3f803f80")
    A("s_nop 0")
    for r in range(8):
        A(f"v_cndmask_b32 v{V1+r}, 0, v12, vcc")
    A("s_mov_b32 s50, 0")
    trace(A, 250)
    A("s_barrier")
    for tile in range(2):
        readK1(A, 1280*tile); readK2(A, 1280*tile)
        A("s_waitcnt lgkmcnt(0)")
        for m in qk(SA, Q1A, Q2A, None): A(m)
        for m in qk(SB, Q1B, Q2B, None): A(m)
        A("s_nop 15")
        A("s_nop 3")
        rowmax16(A, SA, MA, tile == 0)
        rowmax16(A, SB, MB, tile == 0)
    for M in (MA, MB):
        crossmax(A, M)
        A(f"v_add_f32 v{M}, {F.f2u(F.OFF)}, v{M}")
    lmain = A.newlabel("main")
    A.label(lmain)
    for M, C in ((MA, CA), (MB, CB)):
        A(f"v_sub_f32 v{C}, 0, v{M}")
        for r in range(1, 16):
            A(f"v_mov_b32 v{C+r}, v{C}")
    for r in range(16):
        A(f"v_mov_b32 v{OA+r}, 0")
        A(f"v_mov_b32 v{OB+r}, 0")
    for r in range(8):
        A(f"v_mov_b32 v{PB+r}, 0")
    readK1(A, 0); readK2(A, 0)
    readV(A, 0)
    A("s_waitcnt lgkmcnt(0)")
    for m in qk(SA, Q1A, Q2A, CA): A(m)
    A("s_nop 15")
    A("s_mov_b32 s51, 0")
    trace(A, 250)
    lp = A.newlabel("att")
    A.label(lp)
    A("s_cmp_eq_u32 s51, 7")
    A(f"s_mov_b32 s52, {(-(F.STG0 + 28*1280)) & 0xffffffff}")
    A("s_cselect_b32 s52, s52, 5120")
    U = 4
    for t in range(U):
        o = 1280*t
        ms = qk(SB, Q1B, Q2B, CB) + pv(OB, PB)
        if t < U - 1:
            hk1 = (lambda o=o: readK1(A, o + 1280)); hk2 = (lambda o=o: readK2(A, o + 1280))
        else:
            def hk1():
                A("v_add_u32 v2, s52, v2")
                readK1(A, 0)
            def hk2():
                A("v_add_u32 v3, s52, v3")
                readK2(A, 0)
        hooks = {0: hk1, 1: hk2, 3: (lambda o=o: readV(A, o))}
        half(A, SA, PA, ms, hooks)
        ms = qk(SA, Q1A, Q2A, CA) + pv(OA, PA)
        hooks = {("pre", 0): (lambda: A("s_waitcnt lgkmcnt(2)")), ("pre", 2): (lambda: A("s_waitcnt lgkmcnt(0)"))}
        half(A, SB, PB, ms, hooks)
    A("v_add_u32 v4, s52, v4")
    trace(A, 250, 2)
    nb = A.newlabel("nod1")
    A("s_cmp_eq_u32 s51, 0")
    A(f"s_cbranch_scc0 {nb}")
    A("s_cmp_eq_u32 s50, 0")
    A(f"s_cbranch_scc0 {nb}")
    A("s_waitcnt vmcnt(0)")
    A("s_barrier")
    A.label(nb)
    nb2 = A.newlabel("nod2")
    A("s_cmp_eq_u32 s51, 6")
    A(f"s_cbranch_scc0 {nb2}")
    A("s_cmp_eq_u32 s50, 0")
    A(f"s_cbranch_scc0 {nb2}")
    A("s_barrier")
    A.label(nb2)
    A("s_add_u32 s51, s51, 1")
    A("s_cmp_lg_u32 s51, 16")
    A(f"s_cbranch_scc1 {lp}")
    A("s_nop 1")
    for m in pv(OB, PB): A(m)
    A("s_waitcnt lgkmcnt(0)")
    kv_addr_init(A)
    A("s_nop 15")
    A("s_nop 3")
    trace(A, 250)
    lok = A.newlabel("ok")
    A("v_mov_b32 v7, 0")
    for O in (OA, OB):
        for r in range(12):
            A(f"v_fma_f32 v7, v{O+r}, 0, v7")
    A("v_cmp_u_f32 vcc, v7, v7")
    A("s_cmp_lg_u32 s50, 0")
    A(f"s_cbranch_scc1 {lok}")
    A("s_nop 3")
    A("s_cmp_eq_u64 vcc, 0")
    A(f"s_cbranch_scc1 {lok}")
    A("s_mov_b32 s50, 1")
    A(f"v_mov_b32 v{MA}, 0xff800000")
    A(f"v_mov_b32 v{MB}, 0xff800000")
    A("s_mov_b32 s51, 0")
    lf = A.newlabel("fb")
    A.label(lf)
    readK1(A, 0); readK2(A, 0)
    A("s_waitcnt lgkmcnt(0)")
    for m in qk(SA, Q1A, Q2A, None): A(m)
    for m in qk(SB, Q1B, Q2B, None): A(m)
    A("s_nop 15")
    A("s_nop 3")
    rowmax16(A, SA, MA, False)
    rowmax16(A, SB, MB, False)
    A("s_cmp_eq_u32 s51, 31")
    A(f"s_mov_b32 s52, {(-(F.STG0 + 31*1280)) & 0xffffffff}")
    A("s_cselect_b32 s52, s52, 1280")
    A("v_add_u32 v2, s52, v2")
    A("v_add_u32 v3, s52, v3")
    A("s_add_u32 s51, s51, 1")
    A("s_cmp_lg_u32 s51, 64")
    A(f"s_cbranch_scc1 {lf}")
    kv_addr_init(A)
    crossmax(A, MA)
    crossmax(A, MB)
    A(f"s_branch {lmain}")
    A.label(lok)
    A("v_and_b32 v7, 31, v1")
    A("v_lshrrev_b32 v8, 4, v7")
    A("v_mul_u32_u24 v8, 20480, v8")
    A("v_and_b32 v9, 15, v7")
    A("v_lshl_add_u32 v8, v9, 4, v8")
    A(f"s_lshl_b32 s53, s{F.S_CG}, 2")
    A(f"s_add_u32 s53, s53, s{W}")
    A("s_mul_i32 s53, s53, 20")
    offs = []
    for q in range(3):
        for h in range(2):
            d = 54 + h
            A(f"s_add_u32 s56, s53, {8*q + 4*h}")
            A(f"s_lshr_b32 s{d}, s56, 5")
            A(f"s_lshl_b32 s{d}, s{d}, 10")
            A(f"s_bfe_u32 s57, s56, 0x20003")
            A(f"s_lshl_b32 s57, s57, 8")
            A(f"s_add_u32 s{d}, s{d}, s57")
            A(f"s_and_b32 s57, s56, 7")
            A(f"s_lshl_b32 s57, s57, 1")
            A(f"s_add_u32 s{d}, s{d}, s57")
        if q == 2:
            A(f"s_mov_b32 s55, {F.BIG}")
        A("v_mov_b32 v9, s55")
        A("v_mov_b32 v10, s54")
        A(f"v_cndmask_b32 v{13+q}, v9, v10, s[62:63]")
        A(f"v_add_u32 v{13+q}, v{13+q}, v8")
    for s, O in enumerate((OA, OB)):
        A(f"v_mov_b32 v9, v{O+8}")
        A(f"v_mov_b32 v10, v{O+8}")
        A("s_nop 1")
        A("v_permlane32_swap_b32 v9, v10")
        A("s_nop 1")
        A("v_rcp_f32 v10, v10")
        A("s_nop 0")
        for r in range(12):
            A(f"v_mul_f32 v{O+r}, v{O+r}, v10")
        for j in range(6):
            A(f"v_cvt_pk_bf16_f32 v{SA + 8*s + j}, v{O+2*j}, v{O+2*j+1}")
        A(f"s_and_b32 s52, s{W}, 1")
        A(f"s_xor_b32 s52, s52, {s}")
        A("s_lshl_b32 s52, s52, 1")
        A(f"s_lshl_b32 s56, s{F.S_RB}, 2")
        A("s_add_u32 s52, s52, s56")
        A("s_mul_i32 s52, s52, 20480")
        A(f"s_add_u32 s52, s52, {F.WS_O}")
        for q in range(3):
            A(f"buffer_store_dwordx2 {vr(SA + 8*s + 2*q, 2)}, v{13+q}, s[24:27], s52 offen sc1")
    trace(A, 250)
    A("s_waitcnt vmcnt(0)")
    trace(A, 250)
    trace_dump(A, 250, 0, 8)
    A("s_barrier")
    F.tail_common(A, name, is_L=False)
```

```python
from asmlib import *
import fused as F

FACC = 8
FBUF = [88 + 36*i for i in range(4)]

def kv_pieces(A, qs, l):
    n = 0
    for idx, q in enumerate(qs):
        if idx % 4 != l: continue
        lds = (q * 1024 + F.STG0) if q < 80 else (q - 80) * 1024
        A(f"s_mov_b32 m0, {lds}")
        A(f"s_mov_b32 s58, {F.WS_KV + q*1024}")
        A(f"buffer_load_dwordx4 v2, s[24:27], s58 offen sc1 lds")
        n += 1
    return n

KV_SCHED = {17: list(range(36, 80)), 18: list(range(0, 18)), 19: list(range(18, 36))}
KV_A = list(range(80, 160))

def kv_addr(A):
    W = F.S_W
    A(f"s_sub_u32 s39, s{W}, 4")
    A("s_mul_i32 s39, s39, 10")
    A(f"s_and_b32 s40, s{F.S_KVT}, 1")
    A("s_mul_i32 s40, s40, 40960")
    A("v_and_b32 v20, 31, v1")
    A("v_lshrrev_b32 v21, 5, v1")
    A("v_and_b32 v22, 15, v20")
    A("v_xor_b32 v22, v22, v21")
    A("v_mul_u32_u24 v16, 1280, v20")
    A("v_lshl_add_u32 v16, v22, 4, v16")
    F.trlane(A, 20, 21, 22)
    A("v_mul_u32_u24 v17, 40, v20")
    A("v_add_u32 v17, v17, v21")
    A(f"v_add_u32 v17, {F.KVW}, v17")
    for m in range(10):
        A(f"s_add_u32 s41, s39, {m}")
        A("s_and_b32 s42, s41, 7")
        A("s_lshl_b32 s42, s42, 5")
        A("s_lshr_b32 s43, s41, 3")
        A("s_lshl_b32 s43, s43, 8")
        A("s_add_u32 s43, s43, s40")
        A(f"v_xor_b32 v{46+m}, s42, v16")
        A(f"v_add_u32 v{46+m}, s43, v{46+m}")
        A("s_mul_i32 s41, s41, 640")
        A(f"v_add_u32 v{160+m}, s41, v17")
    for r in range(16):
        A(f"v_mov_b32 v{64+r}, 0")
def kv_reads(A):
    for m in range(10):
        b = 80 + 8*m
        A(f"ds_read_b128 {vr(b,4)}, v{46+m}")
        A(f"ds_read_b64_tr_b16 {vr(b+4,2)}, v{160+m}")
        A(f"ds_read_b64_tr_b16 {vr(b+6,2)}, v{160+m} offset:160")
def kv_mfma(A):
    A("s_waitcnt lgkmcnt(0)")
    for m in range(10):
        b = 80 + 8*m
        A(f"v_mfma_f32_32x32x16_bf16 v[64:79], {vr(b+4,4)}, {vr(b,4)}, v[64:79]")
def if_duty(A, fn):
    sk = A.newlabel("nd")
    A("s_cmp_eq_u32 s77, 0")
    A(f"s_cbranch_scc1 {sk}")
    fn(A)
    A.label(sk)

def role_L(A, name):
    W = F.S_W
    A(f"s_setprio {F.L_PRIO_A}")
    A("v_lshlrev_b32 v2, 4, v1")
    A(f"s_cmp_eq_u32 s{W}, 4")
    A(f"s_cbranch_scc0 L_{name}_loader")
    service(A, name)
    A.label(f"L_{name}_loader")
    loader(A, name)

def common_after_loop(A, name, l_is0):
    pass

def kv_reduce_store(A):
    A(f"v_add_u32 v16, {F.KVW}, v2")
    for j in range(12):
        A(f"ds_read_b128 {vr(80 + 4*j, 4)}, v16 offset:{1024*j}")
    A("s_waitcnt lgkmcnt(0)")
    for r in range(16):
        A(f"v_add_f32 v{64+r}, v{64+r}, v{80+r}")
        A(f"v_add_f32 v{96+r}, v{96+r}, v{112+r}")
    for r in range(16):
        A(f"v_add_f32 v{64+r}, v{64+r}, v{96+r}")
    for j in range(6):
        A(f"v_cvt_pk_bf16_f32 v{48+j}, v{64+2*j}, v{65+2*j}")
    A(f"s_lshl_b32 s39, s{F.S_RB}, 1")
    A(f"s_and_b32 s40, s{F.S_KVT}, 1")
    A("s_add_u32 s39, s39, s40")
    A("s_lshr_b32 s40, s39, 5")
    A("s_mul_i32 s40, s40, 81920")
    A("s_and_b32 s39, s39, 31")
    A("s_mul_i32 s39, s39, 1280")
    A("s_add_u32 s39, s39, s40")
    if F.WS_KV: A(f"s_add_u32 s39, s39, {F.WS_KV}")
    A("v_and_b32 v16, 31, v1")
    A("v_lshrrev_b32 v17, 5, v1")
    A(f"v_mov_b32 v22, {F.BIG}")
    A("v_cmp_eq_u32 vcc, 0, v17")
    lv = A.newlabel("isV"); sk = A.newlabel("kvst")
    A(f"s_cmp_lt_u32 s{F.S_KVT}, 2")
    A(f"s_cbranch_scc0 {lv}")
    A(f"buffer_store_dwordx4 v[48:51], v2, s[24:27], s39 offen sc1")
    A("v_lshlrev_b32 v21, 3, v16")
    A("v_cndmask_b32 v21, v22, v21, vcc")
    A(f"buffer_store_dwordx2 v[52:53], v21, s[24:27], s39 offen offset:1024 sc1")
    A(f"s_branch {sk}")
    A.label(lv)
    A("s_add_u32 s39, s39, 40960")
    A("v_lshrrev_b32 v20, 4, v16")
    A("v_mul_u32_u24 v20, 640, v20")
    A("v_bfe_u32 v21, v16, 2, 1")
    A("v_mul_u32_u24 v21, 320, v21")
    A("v_add_u32 v20, v20, v21")
    A("v_bfe_u32 v21, v16, 3, 1")
    A("v_lshl_add_u32 v20, v21, 3, v20")
    A("v_and_b32 v21, 3, v16")
    A("v_lshl_add_u32 v20, v21, 1, v20")
    A("v_lshl_add_u32 v20, v17, 6, v20")
    A("v_cndmask_b32 v21, v22, v20, vcc")
    for r in range(12):
        off = (r % 4) * 16 + (r // 4) * 128
        va = 20 if r < 8 else 21
        op = "buffer_store_short" if r % 2 == 0 else "buffer_store_short_d16_hi"
        A(f"{op} v{48 + r//2}, v{va}, s[24:27], s39 offen offset:{off} sc1")
    A.label(sk)

def nonce_read(A, n):
    A(f"s_waitcnt vmcnt({n})")
    A("v_readfirstlane_b32 s40, v170")
    A("s_nop 3")
    A("s_cmp_eq_u32 s40, 0")
    A(f"s_cselect_b32 s{F.S_NONCE}, s78, s40")
    A(f"v_mov_b32 v16, {F.SPARE}")
    A(f"v_mov_b32 v17, s{F.S_NONCE}")
    A("ds_write_b32 v16, v17")
    A("s_waitcnt lgkmcnt(0)")

def t_ids(A, u, skip):
    A(f"s_add_u32 s39, s{F.S_RB}, {32*(u//2)}")
    A("s_cmp_ge_u32 s39, 68")
    A(f"s_cbranch_scc1 {skip}")
    if u % 2 == 0:
        A(f"s_mov_b32 s43, s{F.S_CG}")
    else:
        A(f"s_sub_u32 s43, s{F.S_CG}, 4")
def t_dma(A, u, slot):
    sk = A.newlabel("noT")
    t_ids(A, u, sk)
    A("s_cmp_lt_u32 s39, 20")
    A("s_cselect_b32 s28, s52, s60")
    A("s_cselect_b32 s29, s53, s61")
    A("s_mov_b32 s40, 819200")
    A("s_cselect_b32 s30, s40, 1966080")
    A("s_mov_b32 s31, 0x00020000")
    A("s_cselect_b32 s40, 0, 20")
    A("s_sub_u32 s40, s39, s40")
    A("s_mul_i32 s40, s40, 40960")
    A(f"s_mul_i32 s41, s43, 160")
    A("s_add_u32 s40, s40, s41")
    for p in range(5):
        A(f"s_mov_b32 m0, {F.KVW + 5120*slot + 1024*p}")
        A("s_nop 0")
        A(f"buffer_load_dwordx4 v{24+p}, s[28:31], s40 offen lds")
    A.label(sk)
def t_proc(A, u, slot):
    sk = A.newlabel("noT2")
    t_ids(A, u, sk)
    A("s_cmp_lt_u32 s39, 20")
    A("s_cselect_b64 vcc, -1, 0")
    A("s_movk_i32 s40, 640")
    A("s_cselect_b32 s40, s40, 1280")
    A("v_cndmask_b32 v21, v20, v19, vcc")
    A("v_add_u32 v22, s40, v21")
    for nt in range(5):
        A(f"ds_read_b64_tr_b16 {vr(32 + 4*nt, 2)}, v21 offset:{5120*slot + 32*nt}")
        A(f"ds_read_b64_tr_b16 {vr(34 + 4*nt, 2)}, v22 offset:{5120*slot + 32*nt}")
    A(f"s_mul_i32 s40, s43, 68")
    A("s_add_u32 s39, s39, s40")
    A("s_mul_i32 s39, s39, 5120")
    A(f"s_add_u32 s39, s39, {F.WS_W2T}")
    A("s_add_u32 s40, s39, 4096")
    A("s_waitcnt lgkmcnt(0)")
    for nt in range(4):
        A(f"buffer_store_dwordx4 {vr(32 + 4*nt, 4)}, v2, s[24:27], s39 offen offset:{1024*nt} sc1")
    A(f"buffer_store_dwordx4 {vr(48, 4)}, v2, s[24:27], s40 offen sc1")
    A.label(sk)

def kv_poll(A, name, half):
    def setup(j):
        A(f"v_lshlrev_b32 v252, 2, v1")
        A(f"v_add_u32 v252, {F.FLG_KV + 256*half}, v252")
    F.poll_flags(A, setup, 1, name)

def service(A, name):
    W = F.S_W
    A("s_memrealtime s[40:41]")
    srd(A, 72, 66, 67, 256)
    A("s_waitcnt lgkmcnt(0)")
    A("s_or_b32 s40, s40, 1")
    A("v_mov_b32 v170, s40")
    A("v_mov_b32 v171, 0")
    A("v_mov_b32 v172, 0")
    A("s_mov_b64 exec, 1")
    A("buffer_atomic_cmpswap v[170:171], v172, s[72:75], 0 offen sc0 sc1")
    A("s_mov_b64 exec, -1")
    A("s_mov_b32 s78, s40")
    F.ln_setup(A)
    if_duty(A, kv_addr)
    F.wait_x(A, 1)
    F.layernorm(A)
    ntouch = 0
    if F.TOUCH:
        A("s_bfe_u32 s41, s2, 0x10002")
        A("s_lshr_b32 s42, s2, 3")
        for (per, rs, colb, sr, n) in ((5, 1280, 640, 12, 2), (12, 3072, 1536, 16, 4)):
            tot = 20 * per
            A(f"s_mul_i32 s43, s42, {20*rs}")
            A(f"s_mul_i32 s44, s41, {colb}")
            A("s_add_u32 s43, s43, s44")
            for i in range(n):
                A(f"v_add_u32 v7, {64*i}, v1")
                F.divmod_lane(A, 7, per, 64*n + 64, 8, 9)
                A(f"v_mul_u32_u24 v8, {rs}, v8")
                A(f"v_lshl_add_u32 v8, v9, 7, v8")
                A(f"v_cmp_gt_u32 vcc, {tot}, v7")
                A(f"v_mov_b32 v9, {F.BIG}")
                A("s_nop 0")
                A("v_cndmask_b32 v8, v9, v8, vcc")
                A(f"buffer_load_dword v{173 + ntouch}, v8, s[{sr}:{sr+3}], s43 offen")
                ntouch += 1
    nond = A.newlabel("svc_nonduty")
    A("s_cmp_eq_u32 s77, 0")
    A(f"s_cbranch_scc1 {nond}")
    A(f"s_waitcnt vmcnt({1 + ntouch}) lgkmcnt(0)")
    trace(A, 250)
    A("s_setprio 0")
    A("s_barrier")
    trace(A, 250)
    kv_reads(A)
    kv_mfma(A)
    for i in range(20):
        trace(A, 250, 2)
        A("s_barrier")
        if i == 1:
            kv_reduce_store(A)
        if i == 5:
            nonce_read(A, 0)
        if i == 5:
            A("s_waitcnt vmcnt(0)")
            F.publish(A, "KV")
        if i == 16: kv_poll(A, name, 0)
        if i in KV_SCHED: kv_pieces(A, KV_SCHED[i], 0)
    A(f"s_branch L_{name}_svcjoin")
    A.label(nond)
    for p in range(5):
        A(f"v_add_u32 v7, {64*p}, v1")
        F.divmod_lane(A, 7, 10, 320, 8, 9)
        A("v_mul_u32_u24 v8, 1280, v8")
        A(f"v_lshl_add_u32 v{24+p}, v9, 4, v8")
    A("v_lshrrev_b32 v16, 4, v1")
    A("v_bfe_u32 v17, v1, 2, 2")
    A("v_and_b32 v18, 3, v1")
    A("v_lshlrev_b32 v19, 3, v16")
    A("v_lshrrev_b32 v20, 1, v16")
    A("v_lshlrev_b32 v20, 4, v20")
    A("v_and_b32 v21, 1, v16")
    A("v_lshl_add_u32 v20, v21, 2, v20")
    for rr in (19, 20):
        A(f"v_add_u32 v{rr}, v{rr}, v17")
        A(f"v_mul_u32_u24 v{rr}, 160, v{rr}")
        A(f"v_lshl_add_u32 v{rr}, v18, 3, v{rr}")
        A(f"v_add_u32 v{rr}, {F.KVW}, v{rr}")
    A("s_waitcnt lgkmcnt(0)")
    trace(A, 250)
    A("s_setprio 0")
    A("s_barrier")
    trace(A, 250)
    for i in range(20):
        trace(A, 250, 2)
        A("s_barrier")
        if i == 3: nonce_read(A, 15)
        if i <= 4: t_dma(A, i, i)
        if 6 <= i <= 10:
            A("s_waitcnt vmcnt(15)")
            t_proc(A, i - 6, i - 6)
        if i == 11: t_dma(A, 5, 0)
        if i == 14:
            A("s_waitcnt vmcnt(0)")
            t_proc(A, 5, 0)
        if i == 16: kv_poll(A, name, 0)
        if i in KV_SCHED: kv_pieces(A, KV_SCHED[i], 0)
    A.label(f"L_{name}_svcjoin")
    after_loop_L(A, name, 0)

NL = 6
def loader(A, name):
    W = F.S_W
    isq = A.newlabel("isq"); dn = A.newlabel("setup_done")
    A(f"s_cmp_eq_u32 s{W}, 7")
    A(f"s_cbranch_scc1 {isq}")
    for i in range(6):
        A(f"s_sub_u32 s39, s{W}, 5")
        A("s_mul_i32 s39, s39, 384")
        A(f"s_add_u32 s39, s39, {64*i}")
        A("v_add_u32 v7, s39, v1")
        F.divmod_lane(A, 7, 24, 768, 8, 9)
        A("v_bfe_u32 v10, v8, 1, 1")
        A("v_lshlrev_b32 v10, 2, v10")
        A("v_xor_b32 v9, v9, v10")
        A("v_mul_u32_u24 v8, 3072, v8")
        A(f"v_lshl_add_u32 v{40+i}, v9, 4, v8")
    for j in range(4):
        A(f"s_mov_b32 s{28+j}, s{16+j}")
    A(f"s_mul_i32 s46, s{F.S_CG}, 384")
    A("s_mov_b32 s47, 98304")
    A(f"s_sub_u32 s48, s{W}, 5")
    A("s_mul_i32 s48, s48, 6144")
    A(f"s_add_u32 s48, s48, {F.STG0}")
    A(f"s_branch {dn}")
    A.label(isq)
    for i in range(6):
        A(f"v_add_u32 v7, {64*i}, v1")
        F.divmod_lane(A, 7, 12, 384, 8, 9)
        A("v_mul_u32_u24 v8, 1280, v8")
        A(f"v_lshl_add_u32 v{40+i}, v9, 4, v8")
        A("v_cmp_lt_u32 vcc, 9, v9")
        A(f"v_mov_b32 v10, {F.BIG}")
        A("s_nop 0")
        A(f"v_cndmask_b32 v{40+i}, v{40+i}, v10, vcc")
    for j in range(4):
        A(f"s_mov_b32 s{28+j}, s{12+j}")
    A(f"s_mul_i32 s46, s{F.S_CG}, 160")
    A("s_mov_b32 s47, 40960")
    A(f"s_mov_b32 s48, {F.STG0 + F.R_WQ}")
    A.label(dn)
    def dma(stage):
        for i in range(6):
            A(f"s_add_u32 m0, s48, {stage*F.STG + 1024*i}")
            A("s_nop 0")
            A(f"buffer_load_dwordx4 v{40+i}, s[28:31], s46 offen lds")
        A("s_add_u32 s46, s46, s47")
    dma(0)
    trace(A, 250, 2)
    dma(1)
    dma(2)
    trace(A, 250, 2)
    F.ln_setup(A)
    if_duty(A, kv_addr)
    trace(A, 250, 2)
    F.wait_x(A, 3*NL)
    trace(A, 250, 2)
    F.layernorm(A)
    A(f"s_waitcnt vmcnt({2*NL}) lgkmcnt(0)")
    trace(A, 250)
    A("s_setprio 0")
    A("s_barrier")
    trace(A, 250)
    def pre0(A):
        kv_reads(A); kv_mfma(A)
        A(f"s_sub_u32 s39, s{W}, 5")
        A("s_lshl_b32 s39, s39, 12")
        A(f"s_add_u32 s39, s39, {F.KVW}")
        A("v_add_u32 v16, s39, v2")
    if_duty(A, pre0)
    for i in range(20):
        A(f"; iter {i}")
        A("__WAIT__%d" % i)
        trace(A, 250, 2)
        A("s_barrier")
        if i + 3 <= 19:
            dma(i % 3)
        if i == 0:
            def it0(A):
                A("s_nop 7")
                for j in range(4):
                    A(f"ds_write_b128 v16, {vr(64 + 4*j, 4)} offset:{1024*j}")
                A("s_waitcnt lgkmcnt(0)")
            if_duty(A, it0)
        if i == 7:
            A(f"v_mov_b32 v16, {F.SPARE}")
            A("ds_read_b32 v17, v16")
            A("s_waitcnt lgkmcnt(0)")
            A(f"v_readfirstlane_b32 s{F.S_NONCE}, v17")
        if i in KV_SCHED:
            done = A.newlabel("kvd")
            for l in (1, 2, 3):
                nx = A.newlabel("kvn")
                A(f"s_cmp_eq_u32 s{W}, {4+l}")
                A(f"s_cbranch_scc0 {nx}")
                kv_pieces(A, KV_SCHED[i], l)
                A(f"s_branch {done}")
                A.label(nx)
            A.label(done)
    after_loop_L(A, name, None)

def npieces(i, l):
    return len([1 for idx, q in enumerate(KV_SCHED[i]) if idx % 4 == l])

def fix_waits(text):
    out = []
    for ln in text.split("\n"):
        s = ln.strip()
        if s.startswith("__WAIT__"):
            i = int(s[8:])
            if i + 1 > 19:
                continue
            n = 0
            if i + 2 <= 19: n += NL
            for it in (i - 2, i - 1):
                if it in KV_SCHED:
                    n += min(npieces(it, l) for l in (1, 2, 3))
            out.append(f"    s_waitcnt vmcnt({min(n, 63)})")
        else:
            out.append(ln)
    return "\n".join(out)

def after_loop_L(A, name, l):
    W = F.S_W
    A("s_waitcnt vmcnt(0)")
    trace(A, 250)
    A("s_barrier")
    kv_poll(A, name, 1)
    if l == 0:
        kv_pieces(A, KV_A, 0)
    else:
        done = A.newlabel("kvd")
        for ll in (1, 2, 3):
            nx = A.newlabel("kvn")
            A(f"s_cmp_eq_u32 s{W}, {4+ll}")
            A(f"s_cbranch_scc0 {nx}")
            kv_pieces(A, KV_A, ll)
            A(f"s_branch {done}")
            A.label(nx)
        A.label(done)
    trace(A, 250)
    A("s_barrier")
    trace(A, 250)
    if l == 0:
        F.publish(A, "H")
        F.publish(A, "T")
    A(f"s_setprio {F.FFN_PRIO}")
    def setup(j):
        A(f"s_or_b32 s40, s{F.S_CG}, 4")
        A("s_lshl_b32 s40, s40, 8")
        A(f"s_add_u32 s40, s40, {F.FLG_T}")
        A(f"s_lshl_b32 s39, s{F.S_RB}, 8")
        A(f"s_add_u32 s39, s39, {F.FLG_H}")
        A("v_lshlrev_b32 v252, 2, v1")
        A("v_add_u32 v252, s40, v252")
        A("v_and_b32 v255, 7, v1")
        A("v_lshlrev_b32 v255, 2, v255")
        A("v_add_u32 v255, s39, v255")
        A("v_cmp_gt_u32 vcc, 32, v1")
        A("s_nop 1")
        A("v_cndmask_b32 v252, v255, v252, vcc")
    F.poll_flags(A, setup, 1, name)
    trace(A, 250)
    A(f"s_sub_u32 s42, s{W}, 4")
    A(f"s_mul_i32 s54, s{F.S_CG}, 68")
    A("s_add_u32 s54, s54, s42")
    A("s_add_u32 s54, s54, 20")
    A("s_mul_i32 s54, s54, 5120")
    A(f"s_add_u32 s54, s54, {F.WS_W2T}")
    for j in range(4):
        A(f"s_lshl_b32 s39, s{F.S_RB}, 2")
        A(f"s_add_u32 s39, s39, {j}")
        A("s_mul_i32 s39, s39, 48")
        A("s_add_u32 s39, s39, s42")
        A("s_lshl_b32 s39, s39, 10")
        A(f"s_add_u32 s{44+j}, s39, {F.WS_H}")
    def loads(i):
        b = FBUF[i % 4]
        A("s_add_u32 s55, s54, 4096")
        for nt in range(4):
            A(f"buffer_load_dwordx4 {vr(b + 4*nt, 4)}, v2, s[24:27], s54 offen offset:{1024*nt} sc1")
        A(f"buffer_load_dwordx4 {vr(b + 16, 4)}, v2, s[24:27], s55 offen sc1")
        for j in range(4):
            A(f"buffer_load_dwordx4 {vr(b + 20 + 4*j, 4)}, v2, s[24:27], s{44+j} offen sc1")
        A(f"s_add_u32 s54, s54, {4*5120}")
        for j in range(4):
            A(f"s_add_u32 s{44+j}, s{44+j}, 4096")
    N = 12
    NT = F.N_TAIL
    for i in range(3):
        loads(i)
    for r in range(80):
        A(f"v_mov_b32 v{FACC + r}, 0")
    for i in range(N):
        if i == F.N_D2:
            A("s_barrier")
        if i == N - NT:
            if i + 3 < N:
                loads(i + 3)
            trace_dump(A, 250, 0, 252) if False else None
            A("s_barrier")
            if l == 0:
                F.publish(A, "O")
        elif i + 3 < N:
            loads(i + 3)
        later = min(N - 1, i + 3) - i
        extra = 1 if (l == 0 and i >= N - NT and i <= N - NT + 3) else 0
        A(f"s_waitcnt vmcnt({9*later})")
        trace(A, 250, 2 if i not in (0, N - NT, N - 1) else 1)
        b = FBUF[i % 4]
        for j in range(4):
            for nt in range(5):
                a = FACC + 20*j + 4*nt
                A(f"v_mfma_f32_16x16x32_bf16 {vr(a,4)}, {vr(b + 4*nt, 4)}, {vr(b + 20 + 4*j, 4)}, {vr(a,4)}")
    if NT == 0:
        A("s_barrier")
        if l == 0:
            F.publish(A, "O")
    A("s_setprio 0")
    trace(A, 250)
    trace_dump(A, 250, 0, 252)
    F.tail_common(A, name, is_L=True, l0=(l == 0))
```

```python
import sys
import asmlib
asmlib.STAMPS = False
asmlib.TRACE = (len(sys.argv) > 2 and sys.argv[2] in ('trace', 'rt'))
asmlib.RT = (len(sys.argv) > 2 and sys.argv[2] == 'rt')
from asmlib import *
import fused, fused_l, os
asmlib.LEVEL = int(os.environ.get('LEVEL', '1'))
for k in ('FFN_PRIO', 'N_TAIL', 'TOUCH', 'L_PRIO_A', 'N_D2', 'HTL', 'CODEPF', 'TLBPF', 'DBL', 'DBL0'):
    if k in os.environ: setattr(fused, k, int(os.environ[k]))
ref = open("parallel_sum__grouped_kv_mqa__dense_activation_squared_relu__prompt.s.ref").read()
hdr = []
for ln in ref.split("\n"):
    if ln.startswith("; Override") or ln.startswith("; grid=") or "@launch" in ln or not ln.startswith(";"):
        if not ln.startswith(";"): break
        continue
    hdr.append(ln)
n = "parallel_sum__grouped_kv_mqa__dense_activation_squared_relu__prompt_kernel"
out = "\n".join(hdr) + "\n"
out += f"; @launch grid=(256,1,1) block=(512,1,1) lds=163840\n"
out += '.amdgcn_target "amdgcn-amd-amdhsa--gfx950"\n.text\n'
out += f".globl {n}\n.p2align 8\n.type {n},@function\n" + fused_l.fix_waits(fused.gen(n)) + "\n"
out += '.section .rodata,"a"\n.p2align 6\n' + kd(n, 256)
dst = sys.argv[1] if len(sys.argv) > 1 else "parallel_sum__grouped_kv_mqa__dense_activation_squared_relu__prompt.s"
open(dst, "w").write(out)
print("wrote", dst, len(out))
```

```python
from asmlib import *
import asmlib, struct

WS_KV = 0
WS_H = 163840
WS_W2T = WS_H + 6291456
WS_O = WS_W2T + 2785280
WS_FLG = WS_O + 2621440
FLG_KV = WS_FLG
FLG_H = WS_FLG + 4096
FLG_T = WS_FLG + 16384
FLG_O = WS_FLG + 32768
WS_TR = WS_FLG + 98304
WS_SIZE = WS_TR + 256*8*2*256
asmlib.TR_BASE = WS_TR

QSCALE = (20 ** -0.5) * 1.4426950408889634
OFF = 88.0
VMASK = 0x000FFFFF
BIG = 0x40000000

def magic(d, maxp):
    for sh in range(8, 24):
        m = (1 << sh) // d + 1
        if m * maxp < (1 << 32) and m < (1 << 24) and all((p * m) >> sh == p // d for p in range(maxp + 1)):
            return m, sh
    raise Exception("no magic")
def f2u(x):
    return struct.unpack("<I", struct.pack("<f", x))[0]

STG0 = 81920
STG = 18432
R_WQ = 12288
KVW = STG0 + 3 * STG
SPARE = KVW + 25600
SPIN_LIMIT = 20000

S_RB, S_CG, S_W = 36, 37, 38
S_NONCE = 76
S_DUTY = 77
S_KVT = 79

def divmod_lane(A, src, d, maxp, q, r, tmp=None):
    m, s = magic(d, maxp)
    A(f"v_mul_u32_u24 v{q}, {m}, v{src}")
    A(f"v_lshrrev_b32 v{q}, {s}, v{q}")
    A(f"v_mul_u32_u24 v{r}, {d}, v{q}")
    A(f"v_sub_u32 v{r}, v{src}, v{r}")

def poll_flags(A, vaddr_setup, nloads, name):
    lp = A.newlabel("poll"); ok = A.newlabel("pollok")
    A("s_mov_b32 s59, 0")
    A.label(lp)
    for i in range(nloads):
        vaddr_setup(i)
        A(f"buffer_load_dword v{253+i}, v252, s[24:27], 0 offen sc1")
    A("s_waitcnt vmcnt(0)")
    A(f"v_xor_b32 v253, s{S_NONCE}, v253")
    for i in range(1, nloads):
        A(f"v_xor_b32 v{253+i}, s{S_NONCE}, v{253+i}")
        A(f"v_or_b32 v253, v253, v{253+i}")
    A("v_cmp_ne_u32 vcc, 0, v253")
    A("s_add_u32 s59, s59, 1")
    A("s_nop 3")
    A("s_cmp_eq_u64 vcc, 0")
    A(f"s_cbranch_scc1 {ok}")
    A(f"s_cmp_gt_u32 s59, {SPIN_LIMIT}")
    A(f"s_cbranch_scc1 {ok}")
    A("s_sleep 4")
    A(f"s_branch {lp}")
    A.label(ok)

def publish(A, kind):
    if kind == "KV":
        A(f"s_lshl_b32 s58, s{S_RB}, 2")
        A(f"s_add_u32 s58, s58, s{S_KVT}")
        A("s_lshl_b32 s58, s58, 2")
        A(f"s_add_u32 s58, s58, {FLG_KV}")
    elif kind in ("H", "O"):
        A(f"s_lshl_b32 s58, s{S_RB}, 6")
        A(f"s_add_u32 s58, s58, s{S_CG}")
        A("s_lshl_b32 s58, s58, 2")
        A(f"s_add_u32 s58, s58, {FLG_H if kind == 'H' else FLG_O}")
    else:
        A(f"s_lshl_b32 s58, s{S_CG}, 6")
        A(f"s_add_u32 s58, s58, s{S_RB}")
        A("s_lshl_b32 s58, s58, 2")
        A(f"s_add_u32 s58, s58, {FLG_T}")
    A("v_mov_b32 v252, 0")
    A(f"v_mov_b32 v253, s{S_NONCE}")
    A("s_mov_b64 exec, 1")
    A("buffer_store_dword v253, v252, s[24:27], s58 offen sc1")
    A("s_mov_b64 exec, -1")

def gen(name):
    A = Asm()
    A.label(name)
    A("s_cmp_ge_u32 s2, 256")
    A(f"s_cbranch_scc1 L_{name}_end")
    A("s_load_dwordx4 s[44:47], s[0:1], 0")
    A("s_load_dwordx4 s[48:51], s[0:1], 16")
    A("s_load_dwordx2 s[52:53], s[0:1], 32")
    A("s_load_dwordx4 s[56:59], s[0:1], 48")
    A("s_load_dwordx4 s[60:63], s[0:1], 64")
    A("s_load_dwordx4 s[64:67], s[0:1], 80")
    A("s_load_dwordx2 s[68:69], s[0:1], 96")
    A("s_and_b32 s39, s2, 7")
    A("s_lshr_b32 s40, s2, 3")
    A(f"s_and_b32 s{S_RB}, s39, 3")
    A(f"s_lshl_b32 s{S_RB}, s{S_RB}, 3")
    A("s_and_b32 s41, s40, 7")
    A(f"s_add_u32 s{S_RB}, s{S_RB}, s41")
    A("s_lshr_b32 s41, s39, 2")
    A(f"s_lshl_b32 s{S_CG}, s41, 2")
    A(f"s_lshr_b32 s{S_KVT}, s40, 3")
    A(f"s_add_u32 s{S_CG}, s{S_CG}, s{S_KVT}")
    A(f"s_xor_b32 s{S_DUTY}, s41, 1")
    A("v_lshrrev_b32 v2, 6, v0")
    A("v_and_b32 v1, 63, v0")
    A(f"v_readfirstlane_b32 s{S_W}, v2")
    A("v_lshrrev_b32 v3, 4, v1")
    A("v_and_b32 v4, 15, v1")
    A(f"s_lshl_b32 s39, s{S_W}, 3")
    A("v_add_u32 v5, s39, v3")
    A("v_mul_u32_u24 v6, 1280, v5")
    A("v_lshl_add_u32 v6, v4, 4, v6")
    A("s_waitcnt lgkmcnt(0)")
    trace_init(A, 250)
    trace(A, 250)
    if HTL:
        A("s_memrealtime s[100:101]")
        A("s_waitcnt lgkmcnt(0)")
    srd(A, 8, 44, 45, 2621440)
    XR = 80
    A(f"s_mul_i32 s39, s{S_RB}, 81920")
    A("s_add_u32 s40, s39, 5120")
    for p in range(2):
        for i in range(5):
            A(f"buffer_load_dwordx4 {vr(XR + 20*p + 4*i, 4)}, v6, s[8:11], s{39+p} offen offset:{256*i}")
    srd(A, 12, 46, 47, 819200)
    srd(A, 16, 56, 57, 1966080)
    srd(A, 24, 68, 69, WS_SIZE)
    srd(A, 32, 58, 59, 3072)
    A(f"s_cmp_lt_u32 s{S_KVT}, 2")
    A("s_cselect_b32 s20, s48, s50")
    A("s_cselect_b32 s21, s49, s51")
    A("s_mov_b32 s22, 25600")
    A("s_mov_b32 s23, 0x00020000")
    nd = A.newlabel("nokvw")
    A(f"s_cmp_eq_u32 s{S_DUTY}, 0")
    A(f"s_cbranch_scc1 {nd}")
    A("v_lshlrev_b32 v2, 4, v1")
    A(f"s_lshl_b32 s39, s{S_W}, 10")
    for i in range(4):
        A(f"s_add_u32 m0, s39, {KVW + 8192*i}")
        A(f"s_add_u32 s40, s39, {8192*i}")
        A(f"buffer_load_dwordx4 v2, s[20:23], s40 offen lds")
    A.label(nd)
    A(f"s_cmp_ge_u32 s{S_W}, 4")
    A(f"s_cbranch_scc1 L_{name}_roleL")
    role_C(A, name)
    A.label(f"L_{name}_roleL")
    role_L(A, name)
    A.label(f"L_{name}_end")
    A("s_endpgm")
    return A.text()

XR = 80
def ln_setup(A):
    A("v_mov_b32 v144, 0x3f803f80")
    for r in range(146, 154):
        A(f"v_mov_b32 v{r}, 0")
    for p in range(2):
        A(f"v_add_u32 v7, {4*p}, v5")
        A("v_and_b32 v8, 15, v7")
        A("v_xor_b32 v8, v8, v4")
        A("v_mul_u32_u24 v7, 1280, v7")
        A(f"v_lshl_add_u32 v{154+p}, v8, 4, v7")

def layernorm(A):
    for p in range(2):
        S, Qs = 146 + 4*p, 148 + 4*p
        for i in range(20):
            x = XR + 20*p + i
            A(f"v_dot2_f32_bf16 v{S + (i&1)}, v{x}, v144, v{S + (i&1)}")
            A(f"v_dot2_f32_bf16 v{Qs + (i&1)}, v{x}, v{x}, v{Qs + (i&1)}")
    A(f"s_mov_b32 s39, {f2u(1.0 / 640)}")
    A(f"s_mov_b32 s40, {f2u(1e-5)}")
    A("s_nop 1")
    for p in range(2):
        S, Qs = 146 + 4*p, 148 + 4*p
        A(f"v_add_f32 v{S}, v{S}, v{S+1}")
        A(f"v_add_f32 v{Qs}, v{Qs}, v{Qs+1}")
    for n, sh in enumerate((8, 4, 2, 1)):
        if n == 0: A("s_nop 0")
        for p in range(2):
            S, Qs = 146 + 4*p, 148 + 4*p
            A(f"v_add_f32_dpp v{S}, v{S}, v{S} row_ror:{sh} row_mask:0xf bank_mask:0xf")
            A(f"v_add_f32_dpp v{Qs}, v{Qs}, v{Qs} row_ror:{sh} row_mask:0xf bank_mask:0xf")
    for p in range(2):
        S, Qs = 146 + 4*p, 148 + 4*p
        A(f"v_mul_f32 v{S}, s39, v{S}")
        A(f"v_mul_f32 v{Qs}, s39, v{Qs}")
    for p in range(2):
        S, Qs = 146 + 4*p, 148 + 4*p
        A(f"v_fma_f32 v{Qs}, -v{S}, v{S}, v{Qs}")
    for p in range(2):
        S, Qs = 146 + 4*p, 148 + 4*p
        A(f"v_max_f32 v{Qs}, 0, v{Qs}")
    for p in range(2):
        S, Qs = 146 + 4*p, 148 + 4*p
        A(f"v_add_f32 v{Qs}, s40, v{Qs}")
    for p in range(2):
        S, Qs = 146 + 4*p, 148 + 4*p
        A(f"v_rsq_f32 v{Qs}, v{Qs}")
    A("s_nop 0")
    for p in range(2):
        S, Qs = 146 + 4*p, 148 + 4*p
        A(f"v_mul_f32 v{Qs+1}, -v{S}, v{Qs}")
    n = 0
    for p in range(2):
        P = 148 + 4*p
        for i in range(5):
            for j in range(4):
                x = XR + 20*p + 4*i + j
                t = 156 + 2*(n & 1); n += 1
                A(f"v_lshlrev_b32 v{t}, 16, v{x}")
                A(f"v_and_b32 v{t+1}, 0xffff0000, v{x}")
                A(f"v_pk_fma_f32 v[{t}:{t+1}], v[{t}:{t+1}], v[{P}:{P+1}], v[{P}:{P+1}] op_sel:[0,0,1] op_sel_hi:[1,0,1]")
                A(f"v_cvt_pk_bf16_f32 v{x}, v{t}, v{t+1}")
            A(f"ds_write_b128 v{154+p}, {vr(XR + 20*p + 4*i, 4)} offset:{256*i}")

def xaddr(A, dst0, tmp=16):
    A(f"v_and_b32 v{tmp}, 31, v1")
    A(f"v_lshrrev_b32 v{tmp+1}, 5, v1")
    A(f"v_and_b32 v{tmp+2}, 15, v{tmp}")
    A(f"v_xor_b32 v{tmp+2}, v{tmp+2}, v{tmp+1}")
    A(f"v_mul_u32_u24 v{tmp+3}, 1280, v{tmp}")
    A(f"v_lshl_add_u32 v{tmp+3}, v{tmp+2}, 4, v{tmp+3}")
    for k in range(8):
        A(f"v_xor_b32 v{dst0+k}, {k << 5}, v{tmp+3}")

def trlane(A, k, colb, tmp):
    A(f"v_lshrrev_b32 v{k}, 5, v1")
    A(f"v_bfe_u32 v{tmp}, v1, 2, 2")
    A(f"v_lshl_add_u32 v{k}, v{k}, 3, v{tmp}")
    A(f"v_bfe_u32 v{colb}, v1, 4, 1")
    A(f"v_lshlrev_b32 v{colb}, 5, v{colb}")
    A(f"v_and_b32 v{tmp+1}, 3, v1")
    A(f"v_lshl_add_u32 v{colb}, v{tmp+1}, 3, v{colb}")

from fused_c import role_C
from fused_l import role_L

def tail_common(A, name, is_L, l0=False):
    W = S_W
    FACC = 8
    PART = 102400
    TR = 100
    trace_init(A, TR)
    trace(A, TR)
    A("v_lshlrev_b32 v2, 4, v1")
    A(f"s_and_b32 s42, s{W}, 3")
    if not is_L:
        A(f"s_mul_i32 s39, s{S_CG}, 348160")
        A(f"s_add_u32 s39, s39, {WS_W2T}")
        A(f"s_lshl_b32 s40, s{W}, 10")
        A("s_add_u32 s39, s39, s40")
        for i in range(25):
            A(f"s_add_u32 m0, s40, {4096*i}")
            A(f"s_add_u32 s41, s39, {4096*i}")
            A(f"buffer_load_dwordx4 v2, s[24:27], s41 offen sc1 lds")
        for r in range(20):
            A(f"v_mov_b32 v{112 + r}, 0")
        A("s_barrier")
        A("s_waitcnt vmcnt(0)")
    else:
        srd(A, 12, 62, 63, 1280)
        srd(A, 16, 64, 65, 2621440)
        A("v_and_b32 v3, 15, v1")
        A("v_lshrrev_b32 v4, 4, v1")
        A("v_mul_u32_u24 v5, 1280, v3")
        A("v_lshl_add_u32 v5, v4, 3, v5")
        A("v_lshlrev_b32 v6, 3, v4")
        A(f"s_lshl_b32 s39, s{S_RB}, 2")
        A("s_add_u32 s39, s39, s42")
        A("s_mul_i32 s39, s39, 20480")
        A(f"s_mul_i32 s40, s{S_CG}, 160")
        A("s_add_u32 s52, s39, s40")
        A("s_mov_b32 s53, s40")
        for nt in range(5):
            A(f"buffer_load_dwordx2 {vr(232 + 2*nt, 2)}, v5, s[8:11], s52 offen offset:{32*nt}")
        for nt in range(5):
            A(f"buffer_load_dwordx2 {vr(242 + 2*nt, 2)}, v6, s[12:15], s53 offen offset:{32*nt}")
        A("s_nop 7")
        for dj in range(1, 4):
            A(f"s_add_u32 s39, s42, {dj}")
            A("s_and_b32 s39, s39, 3")
            A("s_mul_i32 s40, s39, 15360")
            A(f"s_add_u32 s40, s40, {PART + (3 - dj) * 5120}")
            A("v_add_u32 v7, s40, v2")
            done = A.newlabel("wdone")
            for j in range(4):
                nxt = A.newlabel("wn")
                A(f"s_cmp_eq_u32 s39, {j}")
                A(f"s_cbranch_scc0 {nxt}")
                for nt in range(5):
                    A(f"ds_write_b128 v7, {vr(FACC + 20*j + 4*nt, 4)} offset:{1024*nt}")
                A(f"s_branch {done}")
                A.label(nxt)
            A.label(done)
        done = A.newlabel("mdone")
        for j in range(4):
            nxt = A.newlabel("mn")
            A(f"s_cmp_eq_u32 s42, {j}")
            A(f"s_cbranch_scc0 {nxt}")
            for r in range(20):
                A(f"v_mov_b32 v{112 + r}, v{FACC + 20*j + r}")
            A(f"s_branch {done}")
            A.label(nxt)
        A.label(done)
        A("s_waitcnt lgkmcnt(0)")
        trace(A, TR)
        A("s_barrier")
        A("s_mul_i32 s40, s42, 15360")
        A(f"s_add_u32 s40, s40, {PART}")
        A("v_add_u32 v7, s40, v2")
        for idx in range(3):
            for nt in range(5):
                A(f"ds_read_b128 {vr(172 + 20*idx + 4*nt, 4)}, v7 offset:{5120*idx + 1024*nt}")
        A("s_waitcnt vmcnt(0) lgkmcnt(0)")
        for r in range(20):
            A(f"v_add_f32 v{112+r}, v{112+r}, v{172+r}")
            A(f"v_add_f32 v{192+r}, v{192+r}, v{212+r}")
        for r in range(20):
            A(f"v_add_f32 v{112+r}, v{112+r}, v{192+r}")
        for nt in range(5):
            for hw in range(2):
                xr = 232 + 2*nt + hw; br = 242 + 2*nt + hw; a = 112 + 4*nt + 2*hw
                A(f"v_lshlrev_b32 v8, 16, v{xr}")
                A(f"v_and_b32 v9, 0xffff0000, v{xr}")
                A(f"v_lshlrev_b32 v10, 16, v{br}")
                A(f"v_and_b32 v11, 0xffff0000, v{br}")
                A(f"v_add_f32 v{a}, v{a}, v8")
                A(f"v_add_f32 v{a+1}, v{a+1}, v9")
                A(f"v_add_f32 v{a}, v{a}, v10")
                A(f"v_add_f32 v{a+1}, v{a+1}, v11")
        trace(A, TR)
        if l0:
            def setup(j):
                A(f"s_lshl_b32 s39, s{S_RB}, 8")
                A(f"s_add_u32 s39, s39, {FLG_O}")
                A("v_and_b32 v252, 7, v1")
                A("v_lshlrev_b32 v252, 2, v252")
                A("v_add_u32 v252, s39, v252")
            poll_flags(A, setup, 1, name)
    trace(A, TR)
    A(f"s_lshl_b32 s39, s{S_RB}, 2")
    A("s_add_u32 s39, s39, s42")
    A("s_mul_i32 s39, s39, 20")
    if is_L: A("s_add_u32 s39, s39, 10")
    A("s_lshl_b32 s39, s39, 10")
    A(f"s_add_u32 s39, s39, {WS_O}")
    base = 51200 if is_L else 0
    A(f"v_add_u32 v12, {base}, v2")
    A("s_barrier")
    trace(A, TR)
    for k in range(10):
        if k % 4 == 0 and k:
            A("s_add_u32 s39, s39, 4096")
        A(f"buffer_load_dwordx4 {vr(132 + 4*k, 4)}, v2, s[24:27], s39 offen offset:{1024*(k%4)} sc1")
    WB = (172, 192)
    def wreads(k):
        for nt in range(5):
            A(f"ds_read_b128 {vr(WB[k%2] + 4*nt, 4)}, v12 offset:{(k*5 + nt)*1024}")
    wreads(0)
    for k in range(10):
        if k + 1 < 10:
            wreads(k + 1)
        A(f"s_waitcnt vmcnt({9-k}) lgkmcnt({5 if k + 1 < 10 else 0})")
        for nt in range(5):
            a = 112 + 4*nt
            A(f"v_mfma_f32_16x16x32_bf16 {vr(a,4)}, {vr(WB[k%2] + 4*nt, 4)}, {vr(132 + 4*k, 4)}, {vr(a,4)}")
    A("s_mul_i32 s40, s42, 5120")
    A(f"s_add_u32 s40, s40, {PART}")
    A("v_add_u32 v7, s40, v2")
    A("s_nop 7")
    trace(A, TR)
    if not is_L:
        for nt in range(5):
            A(f"ds_write_b128 v7, {vr(112 + 4*nt, 4)} offset:{1024*nt}")
        A("s_waitcnt lgkmcnt(0)")
        A("s_barrier")
        trace(A, TR)
        trace_dump(A, TR, 1, 8)
        A("s_endpgm")
    else:
        A("s_barrier")
        for nt in range(5):
            A(f"ds_read_b128 {vr(172 + 4*nt, 4)}, v7 offset:{1024*nt}")
        A("s_waitcnt lgkmcnt(0)")
        for r in range(20):
            A(f"v_add_f32 v{112+r}, v{112+r}, v{172+r}")
        for nt in range(5):
            A(f"v_cvt_pk_bf16_f32 v{192 + 2*nt}, v{112 + 4*nt}, v{113 + 4*nt}")
            A(f"v_cvt_pk_bf16_f32 v{193 + 2*nt}, v{114 + 4*nt}, v{115 + 4*nt}")
            A(f"buffer_store_dwordx2 {vr(192 + 2*nt, 2)}, v5, s[16:19], s52 offen offset:{32*nt}")
        trace(A, TR)
        if HTL and l0:
            A("s_waitcnt vmcnt(0)")
            A("s_memrealtime s[98:99]")
            srd(A, 72, 66, 67, 256)
            for k, wg in enumerate((0, 4, 255, 100, 3, 251)):
                sk = A.newlabel("htl")
                A(f"s_cmp_eq_u32 s2, {wg}")
                A(f"s_cbranch_scc0 {sk}")
                A("s_waitcnt lgkmcnt(0)")
                A("v_mov_b32 v8, s100")
                A("v_mov_b32 v9, s98")
                A("v_mov_b32 v10, 0")
                A(f"buffer_store_dwordx2 v[8:9], v10, s[72:75], 0 offen offset:{16 + 8*k}")
                A.label(sk)
        if asmlib.TRACE:
            A("s_waitcnt vmcnt(0)")
            trace(A, TR)
            trace_dump(A, TR, 1, 8)
        A("s_endpgm")


def wait_x(A, later):
    l1 = A.newlabel("wx1"); l2 = A.newlabel("wx2")
    A(f"s_cmp_eq_u32 s{S_DUTY}, 0")
    A(f"s_cbranch_scc1 {l1}")
    A(f"s_waitcnt vmcnt({later + 4})")
    A(f"s_branch {l2}")
    A.label(l1)
    A(f"s_waitcnt vmcnt({later})")
    A.label(l2)
FFN_PRIO = 0
HTL = 0
N_D2 = 3
L_PRIO_A = 2
TOUCH = 1
N_TAIL = 6
```

```python
class Asm:
    G = 0
    def __init__(self):
        self.lines = []
        self.uid = 0
    def __call__(self, s):
        for ln in s.strip("\n").split("\n"):
            self.lines.append("    " + ln.strip() if ln.strip() and not ln.strip().endswith(":") else ln.strip())
    def c(self, s):
        self.lines.append("    ; " + s)
    def label(self, name):
        self.lines.append(name + ":")
    def newlabel(self, base):
        Asm.G += 1
        return f"L_{base}_{Asm.G}"
    def text(self):
        return "\n".join(self.lines) + "\n"

def vr(a, n=1):
    return f"v{a}" if n == 1 else f"v[{a}:{a+n-1}]"
def sr(a, n=1):
    return f"s{a}" if n == 1 else f"s[{a}:{a+n-1}]"

def srd(A, d, lo, hi, nbytes):
    A(f"s_mov_b32 s{d}, s{lo}")
    A(f"s_mov_b32 s{d+1}, s{hi}")
    A(f"s_mov_b32 s{d+2}, {nbytes}")
    A(f"s_mov_b32 s{d+3}, 0x00020000")

def kd(name, vgpr, sgpr=102, accum=None):
    accum = accum or ((vgpr + 3) // 4 * 4)
    return f""".amdhsa_kernel {name}
  .amdhsa_next_free_vgpr {vgpr}
  .amdhsa_next_free_sgpr {sgpr}
  .amdhsa_accum_offset {accum}
  .amdhsa_group_segment_fixed_size 0
  .amdhsa_kernarg_size 104
  .amdhsa_user_sgpr_count 2
  .amdhsa_user_sgpr_kernarg_segment_ptr 1
  .amdhsa_system_sgpr_workgroup_id_x 1
.end_amdhsa_kernel
"""

STAMPS = False
KIDX = 0
TIMELINE = False
def stamp(A, i):
    if not STAMPS: return
    A("s_memtime s[98:99]")
    if TIMELINE and i in (0, 7):
        A("s_memrealtime s[96:97]")
    A("s_waitcnt lgkmcnt(0)")
    A(f"s_mov_b32 s{80+i}, s98")
    if TIMELINE and i in (0, 7):
        A(f"s_mov_b32 s{90 + (i == 7)}, s96")
def stamp_dump(A, n, wg=0, DV=2):
    if not STAMPS: return
    l = A.newlabel("nodump")
    A(f"s_cmp_eq_u32 s2, {wg}")
    A(f"s_cbranch_scc0 {l}")
    if TIMELINE:
        A("s_cmp_eq_u32 s38, 0")
        A(f"s_cbranch_scc0 {l}")
        A("s_load_dwordx2 s[96:97], s[0:1], 88")
        A("s_waitcnt lgkmcnt(0)")
        A(f"s_add_u32 s92, s96, {512 * (TL_DST - asmlib_KIDX())}") if TL_DST >= asmlib_KIDX() else A(f"s_sub_u32 s92, s96, {512 * (asmlib_KIDX() - TL_DST)}")
        A("s_addc_u32 s93, s97, 0") if TL_DST >= asmlib_KIDX() else A("s_subb_u32 s93, s97, 0")
        A("s_mov_b32 s94, 256")
        A("s_mov_b32 s95, 0x00020000")
        vals = ["s90", "s91"]
        A("s_sub_u32 s98, s87, s80")
        A(f"s_sub_u32 s99, s{80 + TL_MID[asmlib_KIDX()]}, s80")
        A(f"s_sub_u32 s89, s{80 + TL_MID2[asmlib_KIDX()]}, s80")
        for j, r in enumerate(["s90", "s91", "s98", "s99", "s89"]):
            A(f"v_mov_b32 v{DV}, {r}")
            A(f"v_mov_b32 v{DV+1}, 0")
            A(f"buffer_store_dword v{DV}, v{DV+1}, s[92:95], 0 offen offset:{20 * asmlib_KIDX() + 4*j}")
        A("s_waitcnt vmcnt(0)")
        A.label(l)
        return
    A("s_load_dwordx2 s[96:97], s[0:1], 88")
    A("s_waitcnt lgkmcnt(0)")
    A("s_mov_b32 s92, s96")
    A("s_mov_b32 s93, s97")
    A("s_mov_b32 s94, 256")
    A("s_mov_b32 s95, 0x00020000")
    A("s_lshl_b32 s98, s38, 5")
    for i in range(n):
        if i == 0:
            A(f"v_mov_b32 v{DV}, s80")
        else:
            A(f"s_sub_u32 s99, s{80+i}, s80")
            A(f"v_mov_b32 v{DV}, s99")
        A(f"v_mov_b32 v{DV+1}, s98")
        A(f"buffer_store_dword v{DV}, v{DV+1}, s[92:95], 0 offen offset:{4*i}")
    A("s_waitcnt vmcnt(0)")
    A.label(l)

TL_MID = [5, 4, 1]
TL_MID2 = [6, 5, 4]
def asmlib_KIDX():
    return KIDX
TL_DST = 2

TRACE = False
TR_BASE = 0
def trace_init(A, reg):
    if not TRACE: return
    A("s_mov_b32 s97, 0")
    A(f"v_mov_b32 v{reg}, 0")
RT = False
LEVEL = 1
def trace(A, reg, lvl=1):
    if not TRACE: return
    if lvl == 3:
        if LEVEL < 2: return
    elif lvl == 2:
        if LEVEL != 2: return
    elif lvl > LEVEL: return
    A("s_memrealtime s[98:99]" if RT else "s_memtime s[98:99]")
    A("s_waitcnt lgkmcnt(0)")
    A("s_mov_b32 m0, s97")
    A("s_nop 0")
    A(f"v_writelane_b32 v{reg}, s98, m0")
    A("s_add_u32 s97, s97, 1")
def trace_dump(A, reg, slot, tmp):
    if not TRACE: return
    A("s_lshl_b32 s98, s2, 3")
    A("s_add_u32 s98, s98, s38")
    A("s_lshl_b32 s98, s98, 1")
    A(f"s_add_u32 s98, s98, {slot}")
    A("s_lshl_b32 s98, s98, 8")
    A(f"s_add_u32 s98, s98, {TR_BASE}")
    A(f"v_lshlrev_b32 v{tmp}, 2, v1")
    A(f"buffer_store_dword v{reg}, v{tmp}, s[24:27], s98 offen")
    A("s_waitcnt vmcnt(0)")
```

```python
from asmlib import *
import asmlib, struct

WS_KV = 0
WS_H = 163840
WS_W2T = WS_H + 6291456
WS_O = WS_W2T + 2785280
WS_FLG = WS_O + 2621440
FLG_KV = WS_FLG
FLG_H = WS_FLG + 4096
FLG_T = WS_FLG + 16384
FLG_O = WS_FLG + 32768
WS_TR = WS_FLG + 98304
WS_SIZE = WS_TR + 256*8*2*256
asmlib.TR_BASE = WS_TR

QSCALE = (20 ** -0.5) * 1.4426950408889634
OFF = 88.0
VMASK = 0x000FFFFF
BIG = 0x40000000

def magic(d, maxp):
    for sh in range(8, 24):
        m = (1 << sh) // d + 1
        if m * maxp < (1 << 32) and m < (1 << 24) and all((p * m) >> sh == p // d for p in range(maxp + 1)):
            return m, sh
    raise Exception("no magic")
def f2u(x):
    return struct.unpack("<I", struct.pack("<f", x))[0]

STG0 = 81920
STG = 18432
R_WQ = 12288
KVW = STG0 + 3 * STG
SPARE = KVW + 25600
SPIN_LIMIT = 20000

S_RB, S_CG, S_W = 36, 37, 38
S_NONCE = 76
S_DUTY = 77
S_KVT = 79

def divmod_lane(A, src, d, maxp, q, r, tmp=None):
    m, s = magic(d, maxp)
    A(f"v_mul_u32_u24 v{q}, {m}, v{src}")
    A(f"v_lshrrev_b32 v{q}, {s}, v{q}")
    A(f"v_mul_u32_u24 v{r}, {d}, v{q}")
    A(f"v_sub_u32 v{r}, v{src}, v{r}")

def poll_flags(A, vaddr_setup, nloads, name):
    lp = A.newlabel("poll"); ok = A.newlabel("pollok")
    A("s_mov_b32 s59, 0")
    A.label(lp)
    for i in range(nloads):
        vaddr_setup(i)
        A(f"buffer_load_dword v{253+i}, v252, s[24:27], 0 offen sc1")
    A("s_waitcnt vmcnt(0)")
    A(f"v_xor_b32 v253, s{S_NONCE}, v253")
    for i in range(1, nloads):
        A(f"v_xor_b32 v{253+i}, s{S_NONCE}, v{253+i}")
        A(f"v_or_b32 v253, v253, v{253+i}")
    A("v_cmp_ne_u32 vcc, 0, v253")
    A("s_add_u32 s59, s59, 1")
    A("s_nop 3")
    A("s_cmp_eq_u64 vcc, 0")
    A(f"s_cbranch_scc1 {ok}")
    A(f"s_cmp_gt_u32 s59, {SPIN_LIMIT}")
    A(f"s_cbranch_scc1 {ok}")
    A("s_sleep 4")
    A(f"s_branch {lp}")
    A.label(ok)

def publish(A, kind):
    if kind == "KV":
        A(f"s_lshl_b32 s58, s{S_RB}, 2")
        A(f"s_add_u32 s58, s58, s{S_KVT}")
        A("s_lshl_b32 s58, s58, 2")
        A(f"s_add_u32 s58, s58, {FLG_KV}")
    elif kind in ("H", "O"):
        A(f"s_lshl_b32 s58, s{S_RB}, 6")
        A(f"s_add_u32 s58, s58, s{S_CG}")
        A("s_lshl_b32 s58, s58, 2")
        A(f"s_add_u32 s58, s58, {FLG_H if kind == 'H' else FLG_O}")
    else:
        A(f"s_lshl_b32 s58, s{S_CG}, 6")
        A(f"s_add_u32 s58, s58, s{S_RB}")
        A("s_lshl_b32 s58, s58, 2")
        A(f"s_add_u32 s58, s58, {FLG_T}")
    A("v_mov_b32 v252, 0")
    A(f"v_mov_b32 v253, s{S_NONCE}")
    A("s_mov_b64 exec, 1")
    A("buffer_store_dword v253, v252, s[24:27], s58 offen sc1")
    A("s_mov_b64 exec, -1")

def gen(name):
    A = Asm()
    A.label(name)
    A("s_cmp_ge_u32 s2, 256")
    A(f"s_cbranch_scc1 L_{name}_end")
    A("s_load_dwordx4 s[44:47], s[0:1], 0")
    A("s_load_dwordx4 s[48:51], s[0:1], 16")
    A("s_load_dwordx2 s[52:53], s[0:1], 32")
    A("s_load_dwordx4 s[56:59], s[0:1], 48")
    A("s_load_dwordx4 s[60:63], s[0:1], 64")
    A("s_load_dwordx4 s[64:67], s[0:1], 80")
    A("s_load_dwordx2 s[68:69], s[0:1], 96")
    A("s_and_b32 s39, s2, 7")
    A("s_lshr_b32 s40, s2, 3")
    A(f"s_and_b32 s{S_RB}, s39, 3")
    A(f"s_lshl_b32 s{S_RB}, s{S_RB}, 3")
    A("s_and_b32 s41, s40, 7")
    A(f"s_add_u32 s{S_RB}, s{S_RB}, s41")
    A("s_lshr_b32 s41, s39, 2")
    A(f"s_lshl_b32 s{S_CG}, s41, 2")
    A(f"s_lshr_b32 s{S_KVT}, s40, 3")
    A(f"s_add_u32 s{S_CG}, s{S_CG}, s{S_KVT}")
    A(f"s_xor_b32 s{S_DUTY}, s41, 1")
    A("v_lshrrev_b32 v2, 6, v0")
    A("v_and_b32 v1, 63, v0")
    A(f"v_readfirstlane_b32 s{S_W}, v2")
    A("v_lshrrev_b32 v3, 4, v1")
    A("v_and_b32 v4, 15, v1")
    A(f"s_lshl_b32 s39, s{S_W}, 3")
    A("v_add_u32 v5, s39, v3")
    A("v_mul_u32_u24 v249, 1280, v5")
    A("v_lshl_add_u32 v249, v4, 4, v249")
    A("s_nop 2")
    A(f"s_cmp_ge_u32 s{S_W}, 4")
    A(f"s_cbranch_scc1 L_{name}_roleL")
    role_C(A, name)
    A.label(f"L_{name}_roleL")
    role_L(A, name)
    A.label(f"L_{name}_end")
    A("s_endpgm")
    return A.text()

XR = 80
def ln_setup(A):
    A("v_mov_b32 v144, 0x3f803f80")
    for r in range(146, 154):
        A(f"v_mov_b32 v{r}, 0")
    for p in range(2):
        A(f"v_add_u32 v7, {4*p}, v5")
        A("v_and_b32 v8, 15, v7")
        A("v_xor_b32 v8, v8, v4")
        A("v_mul_u32_u24 v7, 1280, v7")
        A(f"v_lshl_add_u32 v{154+p}, v8, 4, v7")

def layernorm(A):
    for p in range(2):
        S, Qs = 146 + 4*p, 148 + 4*p
        for i in range(20):
            x = XR + 20*p + i
            A(f"v_dot2_f32_bf16 v{S + (i&1)}, v{x}, v144, v{S + (i&1)}")
            A(f"v_dot2_f32_bf16 v{Qs + (i&1)}, v{x}, v{x}, v{Qs + (i&1)}")
    A(f"s_mov_b32 s39, {f2u(1.0 / 640)}")
    A(f"s_mov_b32 s40, {f2u(1e-5)}")
    A("s_nop 1")
    for p in range(2):
        S, Qs = 146 + 4*p, 148 + 4*p
        A(f"v_add_f32 v{S}, v{S}, v{S+1}")
        A(f"v_add_f32 v{Qs}, v{Qs}, v{Qs+1}")
    for n, sh in enumerate((8, 4, 2, 1)):
        if n == 0: A("s_nop 0")
        for p in range(2):
            S, Qs = 146 + 4*p, 148 + 4*p
            A(f"v_add_f32_dpp v{S}, v{S}, v{S} row_ror:{sh} row_mask:0xf bank_mask:0xf")
            A(f"v_add_f32_dpp v{Qs}, v{Qs}, v{Qs} row_ror:{sh} row_mask:0xf bank_mask:0xf")
    for p in range(2):
        S, Qs = 146 + 4*p, 148 + 4*p
        A(f"v_mul_f32 v{S}, s39, v{S}")
        A(f"v_mul_f32 v{Qs}, s39, v{Qs}")
    for p in range(2):
        S, Qs = 146 + 4*p, 148 + 4*p
        A(f"v_fma_f32 v{Qs}, -v{S}, v{S}, v{Qs}")
    for p in range(2):
        S, Qs = 146 + 4*p, 148 + 4*p
        A(f"v_max_f32 v{Qs}, 0, v{Qs}")
    for p in range(2):
        S, Qs = 146 + 4*p, 148 + 4*p
        A(f"v_add_f32 v{Qs}, s40, v{Qs}")
    for p in range(2):
        S, Qs = 146 + 4*p, 148 + 4*p
        A(f"v_rsq_f32 v{Qs}, v{Qs}")
    A("s_nop 0")
    for p in range(2):
        S, Qs = 146 + 4*p, 148 + 4*p
        A(f"v_mul_f32 v{Qs+1}, -v{S}, v{Qs}")
    n = 0
    for p in range(2):
        P = 148 + 4*p
        for i in range(5):
            for j in range(4):
                x = XR + 20*p + 4*i + j
                t = 156 + 2*(n & 1); n += 1
                A(f"v_lshlrev_b32 v{t}, 16, v{x}")
                A(f"v_and_b32 v{t+1}, 0xffff0000, v{x}")
                A(f"v_pk_fma_f32 v[{t}:{t+1}], v[{t}:{t+1}], v[{P}:{P+1}], v[{P}:{P+1}] op_sel:[0,0,1] op_sel_hi:[1,0,1]")
                A(f"v_cvt_pk_bf16_f32 v{x}, v{t}, v{t+1}")
            A(f"ds_write_b128 v{154+p}, {vr(XR + 20*p + 4*i, 4)} offset:{256*i}")

def xaddr(A, dst0, tmp=16):
    A(f"v_and_b32 v{tmp}, 31, v1")
    A(f"v_lshrrev_b32 v{tmp+1}, 5, v1")
    A(f"v_and_b32 v{tmp+2}, 15, v{tmp}")
    A(f"v_xor_b32 v{tmp+2}, v{tmp+2}, v{tmp+1}")
    A(f"v_mul_u32_u24 v{tmp+3}, 1280, v{tmp}")
    A(f"v_lshl_add_u32 v{tmp+3}, v{tmp+2}, 4, v{tmp+3}")
    for k in range(8):
        A(f"v_xor_b32 v{dst0+k}, {k << 5}, v{tmp+3}")

def trlane(A, k, colb, tmp):
    A(f"v_lshrrev_b32 v{k}, 5, v1")
    A(f"v_bfe_u32 v{tmp}, v1, 2, 2")
    A(f"v_lshl_add_u32 v{k}, v{k}, 3, v{tmp}")
    A(f"v_bfe_u32 v{colb}, v1, 4, 1")
    A(f"v_lshlrev_b32 v{colb}, 5, v{colb}")
    A(f"v_and_b32 v{tmp+1}, 3, v1")
    A(f"v_lshl_add_u32 v{colb}, v{tmp+1}, 3, v{colb}")

from fused_c import role_C
from fused_l import role_L

def tail_common(A, name, is_L, l0=False):
    W = S_W
    FACC = 8
    PART = 102400
    TR = 100
    trace_init(A, TR)
    trace(A, TR)
    A("v_lshlrev_b32 v2, 4, v1")
    A(f"s_and_b32 s42, s{W}, 3")
    if not is_L:
        A(f"s_mul_i32 s39, s{S_CG}, 348160")
        A(f"s_add_u32 s39, s39, {WS_W2T}")
        A(f"s_lshl_b32 s40, s{W}, 10")
        A("s_add_u32 s39, s39, s40")
        for i in range(25):
            A(f"s_add_u32 m0, s40, {4096*i}")
            A(f"s_add_u32 s41, s39, {4096*i}")
            A(f"buffer_load_dwordx4 v2, s[24:27], s41 offen sc1 lds")
        for r in range(20):
            A(f"v_mov_b32 v{112 + r}, 0")
        A("s_barrier")
        A("s_waitcnt vmcnt(0)")
    else:
        A("s_nop 7")
        for dj in range(1, 4):
            A(f"s_add_u32 s39, s42, {dj}")
            A("s_and_b32 s39, s39, 3")
            A("s_mul_i32 s40, s39, 15360")
            A(f"s_add_u32 s40, s40, {PART + (3 - dj) * 5120}")
            A("v_add_u32 v90, s40, v2")
            done = A.newlabel("wdone")
            for j in range(4):
                nxt = A.newlabel("wn")
                A(f"s_cmp_eq_u32 s39, {j}")
                A(f"s_cbranch_scc0 {nxt}")
                for nt in range(5):
                    A(f"ds_write_b128 v90, {vr(FACC + 20*j + 4*nt, 4)} offset:{1024*nt}")
                A(f"s_branch {done}")
                A.label(nxt)
            A.label(done)
        done = A.newlabel("mdone")
        for j in range(4):
            nxt = A.newlabel("mn")
            A(f"s_cmp_eq_u32 s42, {j}")
            A(f"s_cbranch_scc0 {nxt}")
            for r in range(20):
                A(f"v_mov_b32 v{112 + r}, v{FACC + 20*j + r}")
            A(f"s_branch {done}")
            A.label(nxt)
        A.label(done)
        A("s_waitcnt lgkmcnt(0)")
        trace(A, TR)
        A("s_barrier")
        A("s_mul_i32 s40, s42, 15360")
        A(f"s_add_u32 s40, s40, {PART}")
        A("v_add_u32 v90, s40, v2")
        for idx in range(3):
            for nt in range(5):
                A(f"ds_read_b128 {vr(172 + 20*idx + 4*nt, 4)}, v90 offset:{5120*idx + 1024*nt}")
        A("s_waitcnt vmcnt(0) lgkmcnt(0)")
        for r in range(20):
            A(f"v_add_f32 v{112+r}, v{112+r}, v{172+r}")
            A(f"v_add_f32 v{192+r}, v{192+r}, v{212+r}")
        for r in range(20):
            A(f"v_add_f32 v{112+r}, v{112+r}, v{192+r}")
        for nt in range(5):
            for hw in range(2):
                xr = 232 + 2*nt + hw; br = (242 + 2*nt + hw) if nt < 4 else (6 + hw); a = 112 + 4*nt + 2*hw
                A(f"v_lshlrev_b32 v8, 16, v{xr}")
                A(f"v_and_b32 v9, 0xffff0000, v{xr}")
                A(f"v_lshlrev_b32 v10, 16, v{br}")
                A(f"v_and_b32 v11, 0xffff0000, v{br}")
                A(f"v_add_f32 v{a}, v{a}, v8")
                A(f"v_add_f32 v{a+1}, v{a+1}, v9")
                A(f"v_add_f32 v{a}, v{a}, v10")
                A(f"v_add_f32 v{a+1}, v{a+1}, v11")
        trace(A, TR)
        if l0:
            def setup(j):
                A(f"s_lshl_b32 s39, s{S_RB}, 8")
                A(f"s_add_u32 s39, s39, {FLG_O}")
                A("v_and_b32 v252, 7, v1")
                A("v_lshlrev_b32 v252, 2, v252")
                A("v_add_u32 v252, s39, v252")
            poll_flags(A, setup, 1, name)
    trace(A, TR)
    A(f"s_lshl_b32 s39, s{S_RB}, 2")
    A("s_add_u32 s39, s39, s42")
    A("s_mul_i32 s39, s39, 20")
    if is_L: A("s_add_u32 s39, s39, 10")
    A("s_lshl_b32 s39, s39, 10")
    A(f"s_add_u32 s39, s39, {WS_O}")
    base = 51200 if is_L else 0
    A(f"v_add_u32 v12, {base}, v2")
    A("s_barrier")
    trace(A, TR)
    for k in range(10):
        if k % 4 == 0 and k:
            A("s_add_u32 s39, s39, 4096")
        A(f"buffer_load_dwordx4 {vr(132 + 4*k, 4)}, v2, s[24:27], s39 offen offset:{1024*(k%4)} sc1")
    WB = (172, 192)
    def wreads(k):
        for nt in range(5):
            A(f"ds_read_b128 {vr(WB[k%2] + 4*nt, 4)}, v12 offset:{(k*5 + nt)*1024}")
    wreads(0)
    for k in range(10):
        if k + 1 < 10:
            wreads(k + 1)
        A(f"s_waitcnt vmcnt({9-k}) lgkmcnt({5 if k + 1 < 10 else 0})")
        for nt in range(5):
            a = 112 + 4*nt
            A(f"v_mfma_f32_16x16x32_bf16 {vr(a,4)}, {vr(WB[k%2] + 4*nt, 4)}, {vr(132 + 4*k, 4)}, {vr(a,4)}")
    A("s_mul_i32 s40, s42, 5120")
    A(f"s_add_u32 s40, s40, {PART}")
    A("v_add_u32 v90, s40, v2")
    A("s_nop 7")
    trace(A, TR)
    if not is_L:
        for nt in range(5):
            A(f"ds_write_b128 v90, {vr(112 + 4*nt, 4)} offset:{1024*nt}")
        A("s_waitcnt lgkmcnt(0)")
        A("s_barrier")
        trace(A, TR)
        trace_dump(A, TR, 1, 8)
        A("s_endpgm")
    else:
        A("s_barrier")
        for nt in range(5):
            A(f"ds_read_b128 {vr(172 + 4*nt, 4)}, v90 offset:{1024*nt}")
        A("s_waitcnt lgkmcnt(0)")
        for r in range(20):
            A(f"v_add_f32 v{112+r}, v{112+r}, v{172+r}")
        for nt in range(5):
            A(f"v_cvt_pk_bf16_f32 v{192 + 2*nt}, v{112 + 4*nt}, v{113 + 4*nt}")
            A(f"v_cvt_pk_bf16_f32 v{193 + 2*nt}, v{114 + 4*nt}, v{115 + 4*nt}")
            A(f"buffer_store_dwordx2 {vr(192 + 2*nt, 2)}, v5, s[16:19], s52 offen offset:{32*nt}")
        trace(A, TR)
        if HTL and l0:
            A("s_waitcnt vmcnt(0)")
            A("s_memrealtime s[98:99]")
            srd(A, 72, 66, 67, 256)
            for k, wg in enumerate((0, 4, 255, 100, 3, 251)):
                sk = A.newlabel("htl")
                A(f"s_cmp_eq_u32 s2, {wg}")
                A(f"s_cbranch_scc0 {sk}")
                A("s_waitcnt lgkmcnt(0)")
                A("v_mov_b32 v8, s100")
                A("v_mov_b32 v9, s98")
                A("v_mov_b32 v10, 0")
                A(f"buffer_store_dwordx2 v[8:9], v10, s[72:75], 0 offen offset:{16 + 8*k}")
                A.label(sk)
        if asmlib.TRACE:
            A("s_waitcnt vmcnt(0)")
            trace(A, TR)
            trace_dump(A, TR, 1, 8)
        A("s_endpgm")


def wait_x(A, later):
    l1 = A.newlabel("wx1"); l2 = A.newlabel("wx2")
    A(f"s_cmp_eq_u32 s{S_DUTY}, 0")
    A(f"s_cbranch_scc1 {l1}")
    A(f"s_waitcnt vmcnt({later + 4})")
    A(f"s_branch {l2}")
    A.label(l1)
    A(f"s_waitcnt vmcnt({later})")
    A.label(l2)
FFN_PRIO = 0
CODEPF = 0
HTL = 0
N_D2 = 3
L_PRIO_A = 2
TOUCH = 1
N_TAIL = 6


def after_kernarg(A):
    A("s_waitcnt lgkmcnt(0)")
    trace_init(A, 250)
    trace(A, 250)
    if HTL:
        A("s_memrealtime s[100:101]")
        A("s_waitcnt lgkmcnt(0)")
    srd(A, 8, 44, 45, 2621440)
    srd(A, 12, 46, 47, 819200)
    srd(A, 16, 56, 57, 1966080)
    srd(A, 24, 68, 69, WS_SIZE)
    srd(A, 32, 58, 59, 3072)
    A(f"s_cmp_lt_u32 s{S_KVT}, 2")
    A("s_cselect_b32 s20, s48, s50")
    A("s_cselect_b32 s21, s49, s51")
    A("s_mov_b32 s22, 25600")
    A("s_mov_b32 s23, 0x00020000")

def x_loads(A):
    A(f"s_mul_i32 s39, s{S_RB}, 81920")
    A("s_add_u32 s40, s39, 5120")
    for p in range(2):
        for i in range(5):
            A(f"buffer_load_dwordx4 {vr(XR + 20*p + 4*i, 4)}, v249, s[8:11], s{39+p} offen offset:{256*i}")

def kvw_loads(A):
    nd = A.newlabel("nokvw")
    A(f"s_cmp_eq_u32 s{S_DUTY}, 0")
    A(f"s_cbranch_scc1 {nd}")
    A("v_lshlrev_b32 v255, 4, v1")
    A(f"s_lshl_b32 s39, s{S_W}, 10")
    for i in range(4):
        A(f"s_add_u32 m0, s39, {KVW + 8192*i}")
        A(f"s_add_u32 s40, s39, {8192*i}")
        A(f"buffer_load_dwordx4 v255, s[20:23], s40 offen lds")
    A.label(nd)


def xb_loads(A):
    W = S_W
    srd(A, 12, 62, 63, 1280)
    srd(A, 16, 64, 65, 2621440)
    A(f"s_and_b32 s43, s{W}, 3")
    A("v_and_b32 v3, 15, v1")
    A("v_lshrrev_b32 v4, 4, v1")
    A("v_mul_u32_u24 v5, 1280, v3")
    A("v_lshl_add_u32 v5, v4, 3, v5")
    A("v_lshlrev_b32 v6, 3, v4")
    A(f"s_lshl_b32 s39, s{S_RB}, 2")
    A("s_add_u32 s39, s39, s43")
    A("s_mul_i32 s39, s39, 20480")
    A(f"s_mul_i32 s40, s{S_CG}, 160")
    A("s_add_u32 s52, s39, s40")
    A("s_mov_b32 s53, s40")
    for nt in range(5):
        A(f"buffer_load_dwordx2 {vr(232 + 2*nt, 2)}, v5, s[8:11], s52 offen offset:{32*nt}")
    for nt in range(4):
        A(f"buffer_load_dwordx2 {vr(242 + 2*nt, 2)}, v6, s[12:15], s53 offen offset:{32*nt}")
    A(f"buffer_load_dwordx2 v[6:7], v6, s[12:15], s53 offen offset:128")
```

```python
from asmlib import *
import fused as F

ACCQ, ACCH, BIAS = 128, 160, 208
SETS = (32, 80)
SA, SB, PA, PB, OA, OB, CA, CB = 32, 48, 64, 72, 80, 96, 112, 128
K1, K2, V1, V2 = 144, 148, 152, 156
Q1A, Q1B, Q2A, Q2B = 208, 212, 216, 218
MA, MB = 5, 6

def qk(S, Q1, Q2, C):
    c = "0" if C is None else vr(C, 16)
    return [f"v_mfma_f32_32x32x16_bf16 {vr(S,16)}, {vr(K1,4)}, {vr(Q1,4)}, {c}",
            f"v_mfma_f32_32x32x8_bf16 {vr(S,16)}, {vr(K2,2)}, {vr(Q2,2)}, {vr(S,16)}"]
def pv(O, P):
    return [f"v_mfma_f32_32x32x16_bf16 {vr(O,16)}, {vr(V1,4)}, {vr(P,4)}, {vr(O,16)}",
            f"v_mfma_f32_32x32x16_bf16 {vr(O,16)}, {vr(V2,4)}, {vr(P+4,4)}, {vr(O,16)}"]
def readK1(A, off): A(f"ds_read_b128 {vr(K1,4)}, v2 offset:{off}")
def readK2(A, off): A(f"ds_read_b64 {vr(K2,2)}, v3 offset:{off}")
def readV(A, off):
    A("s_mov_b64 exec, s[60:61]")
    A(f"ds_read_b128 {vr(V1,4)}, v4 offset:{off}")
    A(f"ds_read_b128 {vr(V2,4)}, v4 offset:{off + 640}")
    A("s_mov_b64 exec, -1")
def half(A, S, P, ms, hooks):
    e = [f"v_exp_f32 v{S+i}, v{S+i}" for i in range(16)]
    c = [f"v_cvt_pk_bf16_f32 v{P+i}, v{S+2*i}, v{S+2*i+1}" for i in range(8)]
    def M(i):
        if ("pre", i) in hooks: hooks[("pre", i)]()
        A(ms[i])
        if i in hooks: hooks[i]()
    M(0)
    for x in e[0:4]: A(x)
    M(1)
    for x in e[4:8]: A(x)
    A(c[0]); A(c[1])
    M(2)
    for x in e[8:12]: A(x)
    A(c[2]); A(c[3])
    M(3)
    for x in e[12:16]: A(x)
    for x in c[4:8]: A(x)
def rowmax16(A, S, dst, first):
    if first:
        A(f"v_max3_f32 v{dst}, v{S}, v{S+1}, v{S+2}")
        i = 3
    else:
        i = 0
    while i + 1 < 16:
        A(f"v_max3_f32 v{dst}, v{dst}, v{S+i}, v{S+i+1}")
        i += 2
    if i < 16:
        A(f"v_max_f32 v{dst}, v{dst}, v{S+i}")
def crossmax(A, M):
    A(f"v_mov_b32 v7, v{M}")
    A("s_nop 1")
    A(f"v_permlane32_swap_b32 v7, v{M}")
    A("s_nop 1")
    A(f"v_max_f32 v{M}, v{M}, v7")
def kv_addr_init(A):
    A("v_lshlrev_b32 v2, 4, v1")
    A(f"v_add_u32 v2, {F.STG0}, v2")
    A("v_and_b32 v7, 31, v1")
    A("v_lshlrev_b32 v3, 3, v7")
    A(f"v_add_u32 v3, {F.STG0 + 1024}, v3")
    A("v_lshrrev_b32 v8, 5, v1")
    A("v_mul_u32_u24 v4, 320, v8")
    A("v_lshl_add_u32 v4, v7, 4, v4")
    A(f"v_add_u32 v4, {F.STG0 + 40960}, v4")

def role_C(A, name):
    W = F.S_W
    F.ln_setup(A)
    F.xaddr(A, 2)
    A(f"s_and_b32 s41, s{W}, 1")
    A("s_mul_i32 s42, s41, 40960")
    A("s_sub_u32 s43, 40960, s42")
    for k in range(8):
        A(f"v_add_u32 v{18+k}, s43, v{2+k}")
    for k in range(8):
        A(f"v_add_u32 v{2+k}, s42, v{2+k}")
    F.trlane(A, 26, 27, 28)
    A("v_mul_u32_u24 v10, 192, v26")
    A("v_add_u32 v10, v10, v27")
    A(f"s_mul_i32 s39, s{W}, 40")
    A(f"s_add_u32 s39, s39, {F.STG0 + F.R_WQ}")
    A("v_add_u32 v10, s39, v10")
    A("v_lshrrev_b32 v29, 1, v28")
    A(f"s_lshr_b32 s40, s{W}, 1")
    A("s_mul_i32 s40, s40, 3")
    for i in range(3):
        A(f"s_add_u32 s39, s40, {i}")
        A(f"v_xor_b32 v30, s39, v29")
        A(f"v_mul_u32_u24 v{11+i}, 384, v26")
        A(f"v_lshl_add_u32 v{11+i}, v30, 6, v{11+i}")
        A(f"v_add_u32 v{11+i}, v{11+i}, v27")
        A(f"v_add_u32 v{11+i}, {F.STG0}, v{11+i}")
    F.after_kernarg(A)
    F.x_loads(A)
    F.kvw_loads(A)
    A(f"s_mul_i32 s39, s{F.S_CG}, 384")
    A(f"s_lshr_b32 s40, s{W}, 1")
    A("s_mul_i32 s40, s40, 192")
    A("s_add_u32 s39, s39, s40")
    A("v_lshrrev_b32 v254, 5, v1")
    A("v_lshlrev_b32 v254, 3, v254")
    for i in range(3):
        for q in range(4):
            A(f"buffer_load_dwordx2 {vr(BIAS + 8*i + 2*q, 2)}, v254, s[32:35], s39 offen offset:{64*i + 16*q}")
    trace(A, 250)
    F.wait_x(A, 12)
    trace(A, 250, 3)
    F.layernorm(A)
    A("s_waitcnt vmcnt(0)")
    for i in range(3):
        for q in range(4):
            a = ACCH + 16*i + 4*q
            b = BIAS + 8*i + 2*q
            A(f"v_lshlrev_b32 v{a}, 16, v{b}")
            A(f"v_and_b32 v{a+1}, 0xffff0000, v{b}")
            A(f"v_lshlrev_b32 v{a+2}, 16, v{b+1}")
            A(f"v_and_b32 v{a+3}, 0xffff0000, v{b+1}")
    for r in range(32):
        A(f"v_mov_b32 v{ACCQ+r}, 0")
    def setstage():
        for i in range(4):
            A(f"v_add_u32 v{26+i}, s44, v{10+i}")
    def reads(cs, st):
        L = []
        b = SETS[st]
        for ks in range(2):
            xa = 2*cs + ks
            L.append(f"ds_read_b128 {vr(b + 8*ks, 4)}, v{2+xa}")
            L.append(f"ds_read_b128 {vr(b + 8*ks + 4, 4)}, v{18+xa}")
            L.append(f"ds_read_b64_tr_b16 {vr(b + 16 + 4*ks, 2)}, v26 offset:{16*ks*192}")
            L.append(f"ds_read_b64_tr_b16 {vr(b + 18 + 4*ks, 2)}, v26 offset:{(16*ks+4)*192}")
            for i in range(3):
                L.append(f"ds_read_b64_tr_b16 {vr(b + 24 + 12*ks + 4*i, 2)}, v{27+i} offset:{16*ks*384}")
                L.append(f"ds_read_b64_tr_b16 {vr(b + 26 + 12*ks + 4*i, 2)}, v{27+i} offset:{(16*ks+4)*384}")
        return L
    def mfmas(st):
        L = []
        b = SETS[st]
        for ks in range(2):
            for i in range(3):
                a = ACCH + 16*i
                L.append(f"v_mfma_f32_32x32x16_bf16 {vr(a,16)}, {vr(b + 24 + 12*ks + 4*i, 4)}, {vr(b + 8*ks, 4)}, {vr(a,16)}")
            for s in range(2):
                a = ACCQ + 16*s
                L.append(f"v_mfma_f32_32x32x16_bf16 {vr(a,16)}, {vr(b + 16 + 4*ks, 4)}, {vr(b + 8*ks + 4*s, 4)}, {vr(a,16)}")
        return L
    A("s_mov_b32 s44, 0")
    setstage()
    A("s_waitcnt lgkmcnt(0)")
    trace(A, 250)
    A("s_barrier")
    trace(A, 250)
    for ln in reads(0, 0): A(ln)
    A("s_mov_b32 s43, 5")
    lp = A.newlabel("gemm1")
    A.label(lp)
    for s in range(4):
        st = s % 2
        A(f"s_add_u32 s44, s44, {F.STG}")
        A(f"s_cmp_eq_u32 s44, {3*F.STG}")
        A("s_cselect_b32 s44, 0, s44")
        A("s_waitcnt lgkmcnt(0)")
        A("s_barrier")
        trace(A, 250, 3)
        setstage()
        if s == 3:
            for k in range(8):
                A(f"v_add_u32 v{2+k}, 256, v{2+k}")
                A(f"v_add_u32 v{18+k}, 256, v{18+k}")
        ms = mfmas(st)
        rd = reads((s + 1) % 4, 1 - st)
        for i, m in enumerate(ms):
            A(m)
            for ln in rd[3*i:3*i+3]: A(ln)
    A("s_sub_u32 s43, s43, 1")
    A("s_cmp_lg_u32 s43, 0")
    A(f"s_cbranch_scc1 {lp}")
    A("s_waitcnt lgkmcnt(0)")
    trace(A, 250)
    A("s_nop 15")
    A("s_nop 3")
    A("v_lshrrev_b32 v17, 5, v1")
    A("v_cmp_eq_u32 s[62:63], 0, v17")
    A(f"s_mov_b32 s40, {F.f2u(F.QSCALE)}")
    for s, (Q1, Q2) in enumerate(((Q1A, Q2A), (Q1B, Q2B))):
        a = ACCQ + 16*s
        for r in range(12):
            A(f"v_mul_f32 v{a+r}, s40, v{a+r}")
        for j in range(4):
            A(f"v_cvt_pk_bf16_f32 v{Q1+j}, v{a+2*j}, v{a+2*j+1}")
        for j in range(2):
            A(f"v_cvt_pk_bf16_f32 v{Q2+j}, v{a+8+2*j}, v{a+9+2*j}")
            A(f"v_cndmask_b32 v{Q2+j}, 0, v{Q2+j}, s[62:63]")
    A("v_and_b32 v16, 31, v1")
    A("v_lshrrev_b32 v18, 4, v16")
    A("v_mul_u32_u24 v18, 49152, v18")
    A("v_and_b32 v19, 15, v16")
    A("v_lshl_add_u32 v19, v17, 4, v19")
    A("v_lshl_add_u32 v18, v19, 4, v18")
    A(f"s_lshl_b32 s39, s{F.S_RB}, 2")
    A(f"s_and_b32 s41, s{W}, 1")
    A("s_lshl_b32 s40, s41, 1")
    A("s_add_u32 s39, s39, s40")
    A("s_mul_i32 s39, s39, 48")
    A(f"s_mul_i32 s40, s{F.S_CG}, 6")
    A("s_add_u32 s39, s39, s40")
    A(f"s_lshr_b32 s40, s{W}, 1")
    A("s_mul_i32 s40, s40, 3")
    A("s_add_u32 s39, s39, s40")
    A("s_lshl_b32 s39, s39, 10")
    A(f"s_add_u32 s39, s39, {F.WS_H}")
    for i in range(3):
        a = ACCH + 16*i
        for r in range(16):
            A(f"v_max_f32 v{a+r}, 0, v{a+r}")
        for r in range(16):
            A(f"v_mul_f32 v{a+r}, v{a+r}, v{a+r}")
        for u in range(2):
            d = 220 + 8*i + 4*u
            for j in range(4):
                A(f"v_cvt_pk_bf16_f32 v{d + j}, v{a + 8*u + 2*j}, v{a + 8*u + 2*j + 1}")
            A(f"buffer_store_dwordx4 {vr(d, 4)}, v18, s[24:27], s39 offen offset:{1024*i + 512*u} sc1")
    kv_addr_init(A)
    A(f"s_mov_b32 s60, {F.VMASK}")
    A(f"s_mov_b32 s61, {F.VMASK}")
    A("v_and_b32 v7, 31, v1")
    A("v_cmp_eq_u32 vcc, 20, v7")
    A("v_mov_b32 v12, 0x3f803f80")
    A("s_nop 0")
    for r in range(8):
        A(f"v_cndmask_b32 v{V1+r}, 0, v12, vcc")
    A("s_mov_b32 s50, 0")
    trace(A, 250)
    A("s_barrier")
    readK1(A, 0); readK2(A, 0)
    A("ds_read_b128 v[160:163], v2 offset:1280")
    A("ds_read_b64 v[164:165], v3 offset:1280")
    A("s_waitcnt lgkmcnt(2)")
    for m in qk(SA, Q1A, Q2A, None): A(m)
    for m in qk(SB, Q1B, Q2B, None): A(m)
    A("s_waitcnt lgkmcnt(0)")
    for (S, Q1, Q2) in ((OA, Q1A, Q2A), (OB, Q1B, Q2B)):
        A(f"v_mfma_f32_32x32x16_bf16 {vr(S,16)}, v[160:163], {vr(Q1,4)}, 0")
        A(f"v_mfma_f32_32x32x8_bf16 {vr(S,16)}, v[164:165], {vr(Q2,2)}, {vr(S,16)}")
    A("s_nop 7")
    rowmax16(A, SA, MA, True)
    rowmax16(A, SB, MB, True)
    A("s_nop 7")
    rowmax16(A, OA, MA, False)
    rowmax16(A, OB, MB, False)
    for M in (MA, MB):
        crossmax(A, M)
        A(f"v_add_f32 v{M}, {F.f2u(F.OFF)}, v{M}")
    lmain = A.newlabel("main")
    A.label(lmain)
    for M, C in ((MA, CA), (MB, CB)):
        A(f"v_sub_f32 v{C}, 0, v{M}")
        for r in range(1, 16):
            A(f"v_mov_b32 v{C+r}, v{C}")
    for r in range(16):
        A(f"v_mov_b32 v{OA+r}, 0")
        A(f"v_mov_b32 v{OB+r}, 0")
    for r in range(8):
        A(f"v_mov_b32 v{PB+r}, 0")
    readK1(A, 0); readK2(A, 0)
    readV(A, 0)
    A("s_waitcnt lgkmcnt(0)")
    for m in qk(SA, Q1A, Q2A, CA): A(m)
    A("s_nop 15")
    A("s_mov_b32 s51, 0")
    trace(A, 250)
    lp = A.newlabel("att")
    A.label(lp)
    A("s_cmp_eq_u32 s51, 7")
    A(f"s_mov_b32 s52, {(-(F.STG0 + 28*1280)) & 0xffffffff}")
    A("s_cselect_b32 s52, s52, 5120")
    U = 4
    for t in range(U):
        o = 1280*t
        ms = qk(SB, Q1B, Q2B, CB) + pv(OB, PB)
        if t < U - 1:
            hk1 = (lambda o=o: readK1(A, o + 1280)); hk2 = (lambda o=o: readK2(A, o + 1280))
        else:
            def hk1():
                A("v_add_u32 v2, s52, v2")
                readK1(A, 0)
            def hk2():
                A("v_add_u32 v3, s52, v3")
                readK2(A, 0)
        hooks = {0: hk1, 1: hk2, 3: (lambda o=o: readV(A, o))}
        half(A, SA, PA, ms, hooks)
        ms = qk(SA, Q1A, Q2A, CA) + pv(OA, PA)
        hooks = {("pre", 0): (lambda: A("s_waitcnt lgkmcnt(2)")), ("pre", 2): (lambda: A("s_waitcnt lgkmcnt(0)"))}
        half(A, SB, PB, ms, hooks)
    A("v_add_u32 v4, s52, v4")
    trace(A, 250, 3)
    nb = A.newlabel("nod1")
    A("s_cmp_eq_u32 s51, 0")
    A(f"s_cbranch_scc0 {nb}")
    A("s_cmp_eq_u32 s50, 0")
    A(f"s_cbranch_scc0 {nb}")
    A("s_waitcnt vmcnt(0)")
    A("s_barrier")
    A.label(nb)
    nb2 = A.newlabel("nod2")
    A("s_cmp_eq_u32 s51, 2")
    A(f"s_cbranch_scc0 {nb2}")
    A("s_cmp_eq_u32 s50, 0")
    A(f"s_cbranch_scc0 {nb2}")
    A("s_barrier")
    A.label(nb2)
    A("s_add_u32 s51, s51, 1")
    A("s_cmp_lg_u32 s51, 16")
    A(f"s_cbranch_scc1 {lp}")
    A("s_nop 1")
    for m in pv(OB, PB): A(m)
    A("s_waitcnt lgkmcnt(0)")
    kv_addr_init(A)
    A("s_nop 15")
    A("s_nop 3")
    trace(A, 250)
    lok = A.newlabel("ok")
    A("v_mov_b32 v7, 0")
    for O in (OA, OB):
        for r in range(12):
            A(f"v_fma_f32 v7, v{O+r}, 0, v7")
    A("v_cmp_u_f32 vcc, v7, v7")
    A("s_cmp_lg_u32 s50, 0")
    A(f"s_cbranch_scc1 {lok}")
    A("s_nop 3")
    A("s_cmp_eq_u64 vcc, 0")
    A(f"s_cbranch_scc1 {lok}")
    A("s_mov_b32 s50, 1")
    A(f"v_mov_b32 v{MA}, 0xff800000")
    A(f"v_mov_b32 v{MB}, 0xff800000")
    A("s_mov_b32 s51, 0")
    lf = A.newlabel("fb")
    A.label(lf)
    readK1(A, 0); readK2(A, 0)
    A("s_waitcnt lgkmcnt(0)")
    for m in qk(SA, Q1A, Q2A, None): A(m)
    for m in qk(SB, Q1B, Q2B, None): A(m)
    A("s_nop 15")
    A("s_nop 3")
    rowmax16(A, SA, MA, False)
    rowmax16(A, SB, MB, False)
    A("s_cmp_eq_u32 s51, 31")
    A(f"s_mov_b32 s52, {(-(F.STG0 + 31*1280)) & 0xffffffff}")
    A("s_cselect_b32 s52, s52, 1280")
    A("v_add_u32 v2, s52, v2")
    A("v_add_u32 v3, s52, v3")
    A("s_add_u32 s51, s51, 1")
    A("s_cmp_lg_u32 s51, 64")
    A(f"s_cbranch_scc1 {lf}")
    kv_addr_init(A)
    crossmax(A, MA)
    crossmax(A, MB)
    A(f"s_branch {lmain}")
    A.label(lok)
    A("v_and_b32 v7, 31, v1")
    A("v_lshrrev_b32 v8, 4, v7")
    A("v_mul_u32_u24 v8, 20480, v8")
    A("v_and_b32 v9, 15, v7")
    A("v_lshl_add_u32 v8, v9, 4, v8")
    A(f"s_lshl_b32 s53, s{F.S_CG}, 2")
    A(f"s_add_u32 s53, s53, s{W}")
    A("s_mul_i32 s53, s53, 20")
    offs = []
    for q in range(3):
        for h in range(2):
            d = 54 + h
            A(f"s_add_u32 s56, s53, {8*q + 4*h}")
            A(f"s_lshr_b32 s{d}, s56, 5")
            A(f"s_lshl_b32 s{d}, s{d}, 10")
            A(f"s_bfe_u32 s57, s56, 0x20003")
            A(f"s_lshl_b32 s57, s57, 8")
            A(f"s_add_u32 s{d}, s{d}, s57")
            A(f"s_and_b32 s57, s56, 7")
            A(f"s_lshl_b32 s57, s57, 1")
            A(f"s_add_u32 s{d}, s{d}, s57")
        if q == 2:
            A(f"s_mov_b32 s55, {F.BIG}")
        A("v_mov_b32 v9, s55")
        A("v_mov_b32 v10, s54")
        A(f"v_cndmask_b32 v{13+q}, v9, v10, s[62:63]")
        A(f"v_add_u32 v{13+q}, v{13+q}, v8")
    for s, O in enumerate((OA, OB)):
        A(f"v_mov_b32 v9, v{O+8}")
        A(f"v_mov_b32 v10, v{O+8}")
        A("s_nop 1")
        A("v_permlane32_swap_b32 v9, v10")
        A("s_nop 1")
        A("v_rcp_f32 v10, v10")
        A("s_nop 0")
        for r in range(12):
            A(f"v_mul_f32 v{O+r}, v{O+r}, v10")
        for j in range(6):
            A(f"v_cvt_pk_bf16_f32 v{SA + 8*s + j}, v{O+2*j}, v{O+2*j+1}")
        A(f"s_and_b32 s52, s{W}, 1")
        A(f"s_xor_b32 s52, s52, {s}")
        A("s_lshl_b32 s52, s52, 1")
        A(f"s_lshl_b32 s56, s{F.S_RB}, 2")
        A("s_add_u32 s52, s52, s56")
        A("s_mul_i32 s52, s52, 20480")
        A(f"s_add_u32 s52, s52, {F.WS_O}")
        for q in range(3):
            A(f"buffer_store_dwordx2 {vr(SA + 8*s + 2*q, 2)}, v{13+q}, s[24:27], s52 offen sc1")
    trace(A, 250)
    A("s_waitcnt vmcnt(0)")
    trace(A, 250)
    trace_dump(A, 250, 0, 8)
    A("s_barrier")
    F.tail_common(A, name, is_L=False)
```

```python
from asmlib import *
import fused as F

FACC = 8
FBUF = [88 + 36*i for i in range(4)]

def kv_pieces(A, qs, l):
    n = 0
    for idx, q in enumerate(qs):
        if idx % 4 != l: continue
        lds = (q * 1024 + F.STG0) if q < 80 else (q - 80) * 1024
        A(f"s_mov_b32 m0, {lds}")
        A(f"s_mov_b32 s58, {F.WS_KV + q*1024}")
        A(f"buffer_load_dwordx4 v2, s[24:27], s58 offen sc1 lds")
        n += 1
    return n

KV_SCHED = {17: list(range(36, 80)), 18: list(range(0, 18)), 19: list(range(18, 36))}
KV_A = list(range(80, 160))

def kv_addr(A):
    W = F.S_W
    A(f"s_sub_u32 s39, s{W}, 4")
    A("s_mul_i32 s39, s39, 10")
    A(f"s_and_b32 s40, s{F.S_KVT}, 1")
    A("s_mul_i32 s40, s40, 40960")
    A("v_and_b32 v20, 31, v1")
    A("v_lshrrev_b32 v21, 5, v1")
    A("v_and_b32 v22, 15, v20")
    A("v_xor_b32 v22, v22, v21")
    A("v_mul_u32_u24 v16, 1280, v20")
    A("v_lshl_add_u32 v16, v22, 4, v16")
    F.trlane(A, 20, 21, 22)
    A("v_mul_u32_u24 v17, 40, v20")
    A("v_add_u32 v17, v17, v21")
    A(f"v_add_u32 v17, {F.KVW}, v17")
    for m in range(10):
        A(f"s_add_u32 s41, s39, {m}")
        A("s_and_b32 s42, s41, 7")
        A("s_lshl_b32 s42, s42, 5")
        A("s_lshr_b32 s43, s41, 3")
        A("s_lshl_b32 s43, s43, 8")
        A("s_add_u32 s43, s43, s40")
        A(f"v_xor_b32 v{46+m}, s42, v16")
        A(f"v_add_u32 v{46+m}, s43, v{46+m}")
        A("s_mul_i32 s41, s41, 640")
        A(f"v_add_u32 v{160+m}, s41, v17")
    for r in range(16):
        A(f"v_mov_b32 v{64+r}, 0")
def kv_reads(A):
    for m in range(10):
        b = 80 + 8*m
        A(f"ds_read_b128 {vr(b,4)}, v{46+m}")
        A(f"ds_read_b64_tr_b16 {vr(b+4,2)}, v{160+m}")
        A(f"ds_read_b64_tr_b16 {vr(b+6,2)}, v{160+m} offset:160")
def kv_mfma(A):
    A("s_waitcnt lgkmcnt(0)")
    for m in range(10):
        b = 80 + 8*m
        A(f"v_mfma_f32_32x32x16_bf16 v[64:79], {vr(b+4,4)}, {vr(b,4)}, v[64:79]")
def if_duty(A, fn):
    sk = A.newlabel("nd")
    A("s_cmp_eq_u32 s77, 0")
    A(f"s_cbranch_scc1 {sk}")
    fn(A)
    A.label(sk)

def role_L(A, name):
    W = F.S_W
    A(f"s_setprio {F.L_PRIO_A}")
    A("v_lshlrev_b32 v2, 4, v1")
    A(f"s_cmp_eq_u32 s{W}, 4")
    A(f"s_cbranch_scc0 L_{name}_loader")
    service(A, name)
    A.label(f"L_{name}_loader")
    loader(A, name)

def common_after_loop(A, name, l_is0):
    pass

def kv_reduce_store(A):
    A(f"v_add_u32 v16, {F.KVW}, v2")
    for j in range(12):
        A(f"ds_read_b128 {vr(80 + 4*j, 4)}, v16 offset:{1024*j}")
    A("s_waitcnt lgkmcnt(0)")
    for r in range(16):
        A(f"v_add_f32 v{64+r}, v{64+r}, v{80+r}")
        A(f"v_add_f32 v{96+r}, v{96+r}, v{112+r}")
    for r in range(16):
        A(f"v_add_f32 v{64+r}, v{64+r}, v{96+r}")
    for j in range(6):
        A(f"v_cvt_pk_bf16_f32 v{48+j}, v{64+2*j}, v{65+2*j}")
    A(f"s_lshl_b32 s39, s{F.S_RB}, 1")
    A(f"s_and_b32 s40, s{F.S_KVT}, 1")
    A("s_add_u32 s39, s39, s40")
    A("s_lshr_b32 s40, s39, 5")
    A("s_mul_i32 s40, s40, 81920")
    A("s_and_b32 s39, s39, 31")
    A("s_mul_i32 s39, s39, 1280")
    A("s_add_u32 s39, s39, s40")
    if F.WS_KV: A(f"s_add_u32 s39, s39, {F.WS_KV}")
    A("v_and_b32 v16, 31, v1")
    A("v_lshrrev_b32 v17, 5, v1")
    A(f"v_mov_b32 v22, {F.BIG}")
    A("v_cmp_eq_u32 vcc, 0, v17")
    lv = A.newlabel("isV"); sk = A.newlabel("kvst")
    A(f"s_cmp_lt_u32 s{F.S_KVT}, 2")
    A(f"s_cbranch_scc0 {lv}")
    A(f"buffer_store_dwordx4 v[48:51], v2, s[24:27], s39 offen sc1")
    A("v_lshlrev_b32 v21, 3, v16")
    A("v_cndmask_b32 v21, v22, v21, vcc")
    A(f"buffer_store_dwordx2 v[52:53], v21, s[24:27], s39 offen offset:1024 sc1")
    A(f"s_branch {sk}")
    A.label(lv)
    A("s_add_u32 s39, s39, 40960")
    A("v_lshrrev_b32 v20, 4, v16")
    A("v_mul_u32_u24 v20, 640, v20")
    A("v_bfe_u32 v21, v16, 2, 1")
    A("v_mul_u32_u24 v21, 320, v21")
    A("v_add_u32 v20, v20, v21")
    A("v_bfe_u32 v21, v16, 3, 1")
    A("v_lshl_add_u32 v20, v21, 3, v20")
    A("v_and_b32 v21, 3, v16")
    A("v_lshl_add_u32 v20, v21, 1, v20")
    A("v_lshl_add_u32 v20, v17, 6, v20")
    A("v_cndmask_b32 v21, v22, v20, vcc")
    for r in range(12):
        off = (r % 4) * 16 + (r // 4) * 128
        va = 20 if r < 8 else 21
        op = "buffer_store_short" if r % 2 == 0 else "buffer_store_short_d16_hi"
        A(f"{op} v{48 + r//2}, v{va}, s[24:27], s39 offen offset:{off} sc1")
    A.label(sk)

def nonce_read(A, n):
    A(f"s_waitcnt vmcnt({n})")
    A("v_readfirstlane_b32 s40, v170")
    A("s_nop 3")
    A("s_cmp_eq_u32 s40, 0")
    A(f"s_cselect_b32 s{F.S_NONCE}, s78, s40")
    A(f"v_mov_b32 v16, {F.SPARE}")
    A(f"v_mov_b32 v17, s{F.S_NONCE}")
    A("ds_write_b32 v16, v17")
    A("s_waitcnt lgkmcnt(0)")

def t_ids(A, u, skip):
    A(f"s_add_u32 s39, s{F.S_RB}, {32*(u//2)}")
    A("s_cmp_ge_u32 s39, 68")
    A(f"s_cbranch_scc1 {skip}")
    if u % 2 == 0:
        A(f"s_mov_b32 s43, s{F.S_CG}")
    else:
        A(f"s_sub_u32 s43, s{F.S_CG}, 4")
def t_dma(A, u, slot):
    sk = A.newlabel("noT")
    t_ids(A, u, sk)
    A("s_cmp_lt_u32 s39, 20")
    A("s_cselect_b32 s28, s52, s60")
    A("s_cselect_b32 s29, s53, s61")
    A("s_mov_b32 s40, 819200")
    A("s_cselect_b32 s30, s40, 1966080")
    A("s_mov_b32 s31, 0x00020000")
    A("s_cselect_b32 s40, 0, 20")
    A("s_sub_u32 s40, s39, s40")
    A("s_mul_i32 s40, s40, 40960")
    A(f"s_mul_i32 s41, s43, 160")
    A("s_add_u32 s40, s40, s41")
    for p in range(5):
        A(f"s_mov_b32 m0, {F.KVW + 5120*slot + 1024*p}")
        A("s_nop 0")
        A(f"buffer_load_dwordx4 v{24+p}, s[28:31], s40 offen lds")
    A.label(sk)
def t_proc(A, u, slot):
    sk = A.newlabel("noT2")
    t_ids(A, u, sk)
    A("s_cmp_lt_u32 s39, 20")
    A("s_cselect_b64 vcc, -1, 0")
    A("s_movk_i32 s40, 640")
    A("s_cselect_b32 s40, s40, 1280")
    A("v_cndmask_b32 v21, v20, v19, vcc")
    A("v_add_u32 v22, s40, v21")
    for nt in range(5):
        A(f"ds_read_b64_tr_b16 {vr(32 + 4*nt, 2)}, v21 offset:{5120*slot + 32*nt}")
        A(f"ds_read_b64_tr_b16 {vr(34 + 4*nt, 2)}, v22 offset:{5120*slot + 32*nt}")
    A(f"s_mul_i32 s40, s43, 68")
    A("s_add_u32 s39, s39, s40")
    A("s_mul_i32 s39, s39, 5120")
    A(f"s_add_u32 s39, s39, {F.WS_W2T}")
    A("s_add_u32 s40, s39, 4096")
    A("s_waitcnt lgkmcnt(0)")
    for nt in range(4):
        A(f"buffer_store_dwordx4 {vr(32 + 4*nt, 4)}, v2, s[24:27], s39 offen offset:{1024*nt} sc1")
    A(f"buffer_store_dwordx4 {vr(48, 4)}, v2, s[24:27], s40 offen sc1")
    A.label(sk)

def kv_poll(A, name, half):
    def setup(j):
        A(f"v_lshlrev_b32 v252, 2, v1")
        A(f"v_add_u32 v252, {F.FLG_KV + 256*half}, v252")
    F.poll_flags(A, setup, 1, name)

def service(A, name):
    W = F.S_W
    F.ln_setup(A)
    if_duty(A, kv_addr)
    F.after_kernarg(A)
    F.x_loads(A)
    F.kvw_loads(A)
    srd(A, 72, 66, 67, 256)
    A("s_memrealtime s[70:71]")
    A("s_waitcnt lgkmcnt(0)")
    A("s_or_b32 s78, s70, 1")
    A("v_mov_b32 v170, s78")
    A("v_mov_b32 v171, 0")
    A("v_mov_b32 v172, 0")
    A("s_mov_b64 exec, 1")
    A("buffer_atomic_cmpswap v[170:171], v172, s[72:75], 0 offen sc0 sc1")
    A("s_mov_b64 exec, -1")
    F.wait_x(A, 1)
    F.layernorm(A)
    ntouch = 0
    if F.TOUCH:
        A("s_bfe_u32 s41, s2, 0x10002")
        A("s_lshr_b32 s42, s2, 3")
        for (per, rs, colb, sr, n) in ((5, 1280, 640, 12, 2), (12, 3072, 1536, 16, 4)):
            tot = 20 * per
            A(f"s_mul_i32 s43, s42, {20*rs}")
            A(f"s_mul_i32 s44, s41, {colb}")
            A("s_add_u32 s43, s43, s44")
            for i in range(n):
                A(f"v_add_u32 v7, {64*i}, v1")
                F.divmod_lane(A, 7, per, 64*n + 64, 8, 9)
                A(f"v_mul_u32_u24 v8, {rs}, v8")
                A(f"v_lshl_add_u32 v8, v9, 7, v8")
                A(f"v_cmp_gt_u32 vcc, {tot}, v7")
                A(f"v_mov_b32 v9, {F.BIG}")
                A("s_nop 0")
                A("v_cndmask_b32 v8, v9, v8, vcc")
                A(f"buffer_load_dword v{173 + ntouch}, v8, s[{sr}:{sr+3}], s43 offen")
                ntouch += 1
    nond = A.newlabel("svc_nonduty")
    A("s_cmp_eq_u32 s77, 0")
    A(f"s_cbranch_scc1 {nond}")
    A(f"s_waitcnt vmcnt({1 + ntouch}) lgkmcnt(0)")
    trace(A, 250)
    A("s_setprio 0")
    A("s_barrier")
    trace(A, 250)
    kv_reads(A)
    kv_mfma(A)
    for i in range(20):
        trace(A, 250, 2)
        A("s_barrier")
        if i == 1:
            kv_reduce_store(A)
        if i == 5:
            nonce_read(A, 0)
        if i == 5:
            A("s_waitcnt vmcnt(0)")
            F.publish(A, "KV")
        if i == 16: kv_poll(A, name, 0)
        if i in KV_SCHED: kv_pieces(A, KV_SCHED[i], 0)
    A(f"s_branch L_{name}_svcjoin")
    A.label(nond)
    for p in range(5):
        A(f"v_add_u32 v7, {64*p}, v1")
        F.divmod_lane(A, 7, 10, 320, 8, 9)
        A("v_mul_u32_u24 v8, 1280, v8")
        A(f"v_lshl_add_u32 v{24+p}, v9, 4, v8")
    A("v_lshrrev_b32 v16, 4, v1")
    A("v_bfe_u32 v17, v1, 2, 2")
    A("v_and_b32 v18, 3, v1")
    A("v_lshlrev_b32 v19, 3, v16")
    A("v_lshrrev_b32 v20, 1, v16")
    A("v_lshlrev_b32 v20, 4, v20")
    A("v_and_b32 v21, 1, v16")
    A("v_lshl_add_u32 v20, v21, 2, v20")
    for rr in (19, 20):
        A(f"v_add_u32 v{rr}, v{rr}, v17")
        A(f"v_mul_u32_u24 v{rr}, 160, v{rr}")
        A(f"v_lshl_add_u32 v{rr}, v18, 3, v{rr}")
        A(f"v_add_u32 v{rr}, {F.KVW}, v{rr}")
    A("s_waitcnt lgkmcnt(0)")
    trace(A, 250)
    A("s_setprio 0")
    A("s_barrier")
    trace(A, 250)
    for i in range(20):
        trace(A, 250, 2)
        A("s_barrier")
        if i == 3: nonce_read(A, 15)
        if i <= 4: t_dma(A, i, i)
        if 6 <= i <= 10:
            A("s_waitcnt vmcnt(15)")
            t_proc(A, i - 6, i - 6)
        if i == 11: t_dma(A, 5, 0)
        if i == 14:
            A("s_waitcnt vmcnt(0)")
            t_proc(A, 5, 0)
        if i == 16: kv_poll(A, name, 0)
        if i in KV_SCHED: kv_pieces(A, KV_SCHED[i], 0)
    A.label(f"L_{name}_svcjoin")
    after_loop_L(A, name, 0)

NL = 6
def loader(A, name):
    W = F.S_W
    isq = A.newlabel("isq"); dn = A.newlabel("setup_done")
    A(f"s_cmp_eq_u32 s{W}, 7")
    A(f"s_cbranch_scc1 {isq}")
    for i in range(6):
        A(f"s_sub_u32 s39, s{W}, 5")
        A("s_mul_i32 s39, s39, 384")
        A(f"s_add_u32 s39, s39, {64*i}")
        A("v_add_u32 v7, s39, v1")
        F.divmod_lane(A, 7, 24, 768, 8, 9)
        A("v_bfe_u32 v10, v8, 1, 1")
        A("v_lshlrev_b32 v10, 2, v10")
        A("v_xor_b32 v9, v9, v10")
        A("v_mul_u32_u24 v8, 3072, v8")
        A(f"v_lshl_add_u32 v{40+i}, v9, 4, v8")
    A(f"s_branch {dn}")
    A.label(isq)
    for i in range(6):
        A(f"v_add_u32 v7, {64*i}, v1")
        F.divmod_lane(A, 7, 12, 384, 8, 9)
        A("v_mul_u32_u24 v8, 1280, v8")
        A(f"v_lshl_add_u32 v{40+i}, v9, 4, v8")
        A("v_cmp_lt_u32 vcc, 9, v9")
        A(f"v_mov_b32 v10, {F.BIG}")
        A("s_nop 0")
        A(f"v_cndmask_b32 v{40+i}, v{40+i}, v10, vcc")
    A.label(dn)
    F.ln_setup(A)
    if_duty(A, kv_addr)
    F.after_kernarg(A)
    A(f"s_cmp_eq_u32 s{W}, 7")
    for j in range(4):
        A(f"s_cselect_b32 s{28+j}, s{12+j}, s{16+j}")
    A("s_movk_i32 s39, 160")
    A("s_cselect_b32 s46, s39, 384")
    A(f"s_mul_i32 s46, s46, s{F.S_CG}")
    A("s_mov_b32 s39, 40960")
    A("s_cselect_b32 s47, s39, 98304")
    A(f"s_sub_u32 s48, s{W}, 5")
    A("s_mul_i32 s48, s48, 6144")
    A(f"s_add_u32 s48, s48, {F.STG0}")
    def dma(stage):
        for i in range(6):
            A(f"s_add_u32 m0, s48, {stage*F.STG + 1024*i}")
            A("s_nop 0")
            A(f"buffer_load_dwordx4 v{40+i}, s[28:31], s46 offen lds")
        A("s_add_u32 s46, s46, s47")
    dma(0)
    F.x_loads(A)
    F.kvw_loads(A)
    dma(1)
    trace(A, 250, 2)
    F.wait_x(A, NL)
    trace(A, 250, 2)
    F.layernorm(A)
    dma(2)
    A(f"s_waitcnt vmcnt({2*NL}) lgkmcnt(0)")
    trace(A, 250)
    A("s_setprio 0")
    A("s_barrier")
    trace(A, 250)
    def pre0(A):
        kv_reads(A); kv_mfma(A)
        A(f"s_sub_u32 s39, s{W}, 5")
        A("s_lshl_b32 s39, s39, 12")
        A(f"s_add_u32 s39, s39, {F.KVW}")
        A("v_add_u32 v16, s39, v2")
    if_duty(A, pre0)
    for i in range(20):
        A(f"; iter {i}")
        A("__WAIT__%d" % i)
        trace(A, 250, 2)
        A("s_barrier")
        if i + 3 <= 19:
            dma(i % 3)
        if i == 0:
            def it0(A):
                A("s_nop 7")
                for j in range(4):
                    A(f"ds_write_b128 v16, {vr(64 + 4*j, 4)} offset:{1024*j}")
                A("s_waitcnt lgkmcnt(0)")
            if_duty(A, it0)
        if i == 7:
            A(f"v_mov_b32 v16, {F.SPARE}")
            A("ds_read_b32 v17, v16")
            A("s_waitcnt lgkmcnt(0)")
            A(f"v_readfirstlane_b32 s{F.S_NONCE}, v17")
        if i in KV_SCHED:
            done = A.newlabel("kvd")
            for l in (1, 2, 3):
                nx = A.newlabel("kvn")
                A(f"s_cmp_eq_u32 s{W}, {4+l}")
                A(f"s_cbranch_scc0 {nx}")
                kv_pieces(A, KV_SCHED[i], l)
                A(f"s_branch {done}")
                A.label(nx)
            A.label(done)
    after_loop_L(A, name, None)

def npieces(i, l):
    return len([1 for idx, q in enumerate(KV_SCHED[i]) if idx % 4 == l])

def fix_waits(text):
    out = []
    for ln in text.split("\n"):
        s = ln.strip()
        if s.startswith("__WAIT__"):
            i = int(s[8:])
            if i + 1 > 19:
                continue
            n = 0
            if i + 2 <= 19: n += NL
            for it in (i - 2, i - 1):
                if it in KV_SCHED:
                    n += min(npieces(it, l) for l in (1, 2, 3))
            out.append(f"    s_waitcnt vmcnt({min(n, 63)})")
        else:
            out.append(ln)
    return "\n".join(out)

def after_loop_L(A, name, l):
    W = F.S_W
    A("s_waitcnt vmcnt(0)")
    trace(A, 250)
    A("s_barrier")
    kv_poll(A, name, 1)
    if l == 0:
        kv_pieces(A, KV_A, 0)
    else:
        done = A.newlabel("kvd")
        for ll in (1, 2, 3):
            nx = A.newlabel("kvn")
            A(f"s_cmp_eq_u32 s{W}, {4+ll}")
            A(f"s_cbranch_scc0 {nx}")
            kv_pieces(A, KV_A, ll)
            A(f"s_branch {done}")
            A.label(nx)
        A.label(done)
    trace(A, 250)
    A("s_barrier")
    if l == 0:
        F.publish(A, "H")
        F.publish(A, "T")
    A("s_waitcnt vmcnt(0)")
    A("s_barrier")
    trace(A, 250)
    A(f"s_setprio {F.FFN_PRIO}")
    def setup(j):
        A(f"s_or_b32 s40, s{F.S_CG}, 4")
        A("s_lshl_b32 s40, s40, 8")
        A(f"s_add_u32 s40, s40, {F.FLG_T}")
        A(f"s_lshl_b32 s39, s{F.S_RB}, 8")
        A(f"s_add_u32 s39, s39, {F.FLG_H}")
        A("v_lshlrev_b32 v252, 2, v1")
        A("v_add_u32 v252, s40, v252")
        A("v_and_b32 v255, 7, v1")
        A("v_lshlrev_b32 v255, 2, v255")
        A("v_add_u32 v255, s39, v255")
        A("v_cmp_gt_u32 vcc, 32, v1")
        A("s_nop 1")
        A("v_cndmask_b32 v252, v255, v252, vcc")
    F.poll_flags(A, setup, 1, name)
    trace(A, 250)
    A(f"s_sub_u32 s42, s{W}, 4")
    A(f"s_mul_i32 s54, s{F.S_CG}, 68")
    A("s_add_u32 s54, s54, s42")
    A("s_add_u32 s54, s54, 20")
    A("s_mul_i32 s54, s54, 5120")
    A(f"s_add_u32 s54, s54, {F.WS_W2T}")
    for j in range(4):
        A(f"s_lshl_b32 s39, s{F.S_RB}, 2")
        A(f"s_add_u32 s39, s39, {j}")
        A("s_mul_i32 s39, s39, 48")
        A("s_add_u32 s39, s39, s42")
        A("s_lshl_b32 s39, s39, 10")
        A(f"s_add_u32 s{44+j}, s39, {F.WS_H}")
    def loads(i):
        b = FBUF[i % 4]
        A("s_add_u32 s55, s54, 4096")
        for nt in range(4):
            A(f"buffer_load_dwordx4 {vr(b + 4*nt, 4)}, v2, s[24:27], s54 offen offset:{1024*nt} sc1")
        A(f"buffer_load_dwordx4 {vr(b + 16, 4)}, v2, s[24:27], s55 offen sc1")
        for j in range(4):
            A(f"buffer_load_dwordx4 {vr(b + 20 + 4*j, 4)}, v2, s[24:27], s{44+j} offen sc1")
        A(f"s_add_u32 s54, s54, {4*5120}")
        for j in range(4):
            A(f"s_add_u32 s{44+j}, s{44+j}, 4096")
    N = 12
    NT = F.N_TAIL
    for i in range(3):
        loads(i)
    for r in range(80):
        A(f"v_mov_b32 v{FACC + r}, 0")
    for i in range(N):
        if i == N - NT:
            if i + 3 < N:
                loads(i + 3)
            F.xb_loads(A)
            A("s_barrier")
            if l == 0:
                F.publish(A, "O")
        elif i + 3 < N:
            loads(i + 3)
        later = min(N - 1, i + 3) - i
        extra = 1 if (l == 0 and i >= N - NT and i <= N - NT + 3) else 0
        xb = 10 if (NT > 0 and i >= N - NT and i + 3 >= N) else 0
        A(f"s_waitcnt vmcnt({9*later + xb})")
        trace(A, 250, 2 if i not in (0, N - NT, N - 1) else 1)
        b = FBUF[i % 4]
        for j in range(4):
            for nt in range(5):
                a = FACC + 20*j + 4*nt
                A(f"v_mfma_f32_16x16x32_bf16 {vr(a,4)}, {vr(b + 4*nt, 4)}, {vr(b + 20 + 4*j, 4)}, {vr(a,4)}")
    if NT == 0:
        F.xb_loads(A)
        A("s_barrier")
        if l == 0:
            F.publish(A, "O")
    A("s_setprio 0")
    trace(A, 250)
    trace_dump(A, 250, 0, 252)
    F.tail_common(A, name, is_L=True, l0=(l == 0))
```

```python
from asmlib import *
import fused as F

FACC = 8
FBUF = [88 + 36*i for i in range(4)]

def kv_pieces(A, qs, l):
    n = 0
    for idx, q in enumerate(qs):
        if idx % 4 != l: continue
        lds = (q * 1024 + F.STG0) if q < 80 else (q - 80) * 1024
        A(f"s_mov_b32 m0, {lds}")
        A(f"s_mov_b32 s58, {F.WS_KV + q*1024}")
        A(f"buffer_load_dwordx4 v2, s[24:27], s58 offen sc1 lds")
        n += 1
    return n

KV_SCHED = {17: list(range(36, 80)), 18: list(range(0, 18)), 19: list(range(18, 36))}
KV_A = list(range(80, 160))

def kv_addr(A):
    W = F.S_W
    A(f"s_sub_u32 s39, s{W}, 4")
    A("s_mul_i32 s39, s39, 10")
    A(f"s_and_b32 s40, s{F.S_KVT}, 1")
    A("s_mul_i32 s40, s40, 40960")
    A("v_and_b32 v20, 31, v1")
    A("v_lshrrev_b32 v21, 5, v1")
    A("v_and_b32 v22, 15, v20")
    A("v_xor_b32 v22, v22, v21")
    A("v_mul_u32_u24 v16, 1280, v20")
    A("v_lshl_add_u32 v16, v22, 4, v16")
    F.trlane(A, 20, 21, 22)
    A("v_mul_u32_u24 v17, 40, v20")
    A("v_add_u32 v17, v17, v21")
    A(f"v_add_u32 v17, {F.KVW}, v17")
    for m in range(10):
        A(f"s_add_u32 s41, s39, {m}")
        A("s_and_b32 s42, s41, 7")
        A("s_lshl_b32 s42, s42, 5")
        A("s_lshr_b32 s43, s41, 3")
        A("s_lshl_b32 s43, s43, 8")
        A("s_add_u32 s43, s43, s40")
        A(f"v_xor_b32 v{46+m}, s42, v16")
        A(f"v_add_u32 v{46+m}, s43, v{46+m}")
        A("s_mul_i32 s41, s41, 640")
        A(f"v_add_u32 v{160+m}, s41, v17")
    for r in range(16):
        A(f"v_mov_b32 v{64+r}, 0")
def kv_reads(A):
    for m in range(10):
        b = 80 + 8*m
        A(f"ds_read_b128 {vr(b,4)}, v{46+m}")
        A(f"ds_read_b64_tr_b16 {vr(b+4,2)}, v{160+m}")
        A(f"ds_read_b64_tr_b16 {vr(b+6,2)}, v{160+m} offset:160")
def kv_mfma(A):
    A("s_waitcnt lgkmcnt(0)")
    for m in range(10):
        b = 80 + 8*m
        A(f"v_mfma_f32_32x32x16_bf16 v[64:79], {vr(b+4,4)}, {vr(b,4)}, v[64:79]")
def if_duty(A, fn):
    sk = A.newlabel("nd")
    A("s_cmp_eq_u32 s77, 0")
    A(f"s_cbranch_scc1 {sk}")
    fn(A)
    A.label(sk)

def role_L(A, name):
    W = F.S_W
    A(f"s_setprio {F.L_PRIO_A}")
    A("v_lshlrev_b32 v2, 4, v1")
    A(f"s_cmp_eq_u32 s{W}, 4")
    A(f"s_cbranch_scc0 L_{name}_loader")
    service(A, name)
    A.label(f"L_{name}_loader")
    loader(A, name)

def common_after_loop(A, name, l_is0):
    pass

def kv_reduce_store(A):
    A(f"v_add_u32 v16, {F.KVW}, v2")
    for j in range(12):
        A(f"ds_read_b128 {vr(80 + 4*j, 4)}, v16 offset:{1024*j}")
    A("s_waitcnt lgkmcnt(0)")
    for r in range(16):
        A(f"v_add_f32 v{64+r}, v{64+r}, v{80+r}")
        A(f"v_add_f32 v{96+r}, v{96+r}, v{112+r}")
    for r in range(16):
        A(f"v_add_f32 v{64+r}, v{64+r}, v{96+r}")
    for j in range(6):
        A(f"v_cvt_pk_bf16_f32 v{48+j}, v{64+2*j}, v{65+2*j}")
    A(f"s_lshl_b32 s39, s{F.S_RB}, 1")
    A(f"s_and_b32 s40, s{F.S_KVT}, 1")
    A("s_add_u32 s39, s39, s40")
    A("s_lshr_b32 s40, s39, 5")
    A("s_mul_i32 s40, s40, 81920")
    A("s_and_b32 s39, s39, 31")
    A("s_mul_i32 s39, s39, 1280")
    A("s_add_u32 s39, s39, s40")
    if F.WS_KV: A(f"s_add_u32 s39, s39, {F.WS_KV}")
    A("v_and_b32 v16, 31, v1")
    A("v_lshrrev_b32 v17, 5, v1")
    A(f"v_mov_b32 v22, {F.BIG}")
    A("v_cmp_eq_u32 vcc, 0, v17")
    lv = A.newlabel("isV"); sk = A.newlabel("kvst")
    A(f"s_cmp_lt_u32 s{F.S_KVT}, 2")
    A(f"s_cbranch_scc0 {lv}")
    A(f"buffer_store_dwordx4 v[48:51], v2, s[24:27], s39 offen sc1")
    A("v_lshlrev_b32 v21, 3, v16")
    A("v_cndmask_b32 v21, v22, v21, vcc")
    A(f"buffer_store_dwordx2 v[52:53], v21, s[24:27], s39 offen offset:1024 sc1")
    A(f"s_branch {sk}")
    A.label(lv)
    A("s_add_u32 s39, s39, 40960")
    A("v_lshrrev_b32 v20, 4, v16")
    A("v_mul_u32_u24 v20, 640, v20")
    A("v_bfe_u32 v21, v16, 2, 1")
    A("v_mul_u32_u24 v21, 320, v21")
    A("v_add_u32 v20, v20, v21")
    A("v_bfe_u32 v21, v16, 3, 1")
    A("v_lshl_add_u32 v20, v21, 3, v20")
    A("v_and_b32 v21, 3, v16")
    A("v_lshl_add_u32 v20, v21, 1, v20")
    A("v_lshl_add_u32 v20, v17, 6, v20")
    A("v_cndmask_b32 v21, v22, v20, vcc")
    for r in range(12):
        off = (r % 4) * 16 + (r // 4) * 128
        va = 20 if r < 8 else 21
        op = "buffer_store_short" if r % 2 == 0 else "buffer_store_short_d16_hi"
        A(f"{op} v{48 + r//2}, v{va}, s[24:27], s39 offen offset:{off} sc1")
    A.label(sk)

def nonce_read(A, n):
    A(f"s_waitcnt vmcnt({n})")
    A("v_readfirstlane_b32 s40, v170")
    A("s_nop 3")
    A("s_cmp_eq_u32 s40, 0")
    A(f"s_cselect_b32 s{F.S_NONCE}, s78, s40")
    A(f"v_mov_b32 v16, {F.SPARE}")
    A(f"v_mov_b32 v17, s{F.S_NONCE}")
    A("ds_write_b32 v16, v17")
    A("s_waitcnt lgkmcnt(0)")

def t_ids(A, u, skip):
    A(f"s_add_u32 s39, s{F.S_RB}, {32*(u//2)}")
    A("s_cmp_ge_u32 s39, 68")
    A(f"s_cbranch_scc1 {skip}")
    if u % 2 == 0:
        A(f"s_mov_b32 s43, s{F.S_CG}")
    else:
        A(f"s_sub_u32 s43, s{F.S_CG}, 4")
def t_dma(A, u, slot):
    sk = A.newlabel("noT")
    t_ids(A, u, sk)
    A("s_cmp_lt_u32 s39, 20")
    A("s_cselect_b32 s28, s52, s60")
    A("s_cselect_b32 s29, s53, s61")
    A("s_mov_b32 s40, 819200")
    A("s_cselect_b32 s30, s40, 1966080")
    A("s_mov_b32 s31, 0x00020000")
    A("s_cselect_b32 s40, 0, 20")
    A("s_sub_u32 s40, s39, s40")
    A("s_mul_i32 s40, s40, 40960")
    A(f"s_mul_i32 s41, s43, 160")
    A("s_add_u32 s40, s40, s41")
    for p in range(5):
        A(f"s_mov_b32 m0, {F.KVW + 5120*slot + 1024*p}")
        A("s_nop 0")
        A(f"buffer_load_dwordx4 v{24+p}, s[28:31], s40 offen lds")
    A.label(sk)
def t_proc(A, u, slot):
    sk = A.newlabel("noT2")
    t_ids(A, u, sk)
    A("s_cmp_lt_u32 s39, 20")
    A("s_cselect_b64 vcc, -1, 0")
    A("s_movk_i32 s40, 640")
    A("s_cselect_b32 s40, s40, 1280")
    A("v_cndmask_b32 v21, v20, v19, vcc")
    A("v_add_u32 v22, s40, v21")
    for nt in range(5):
        A(f"ds_read_b64_tr_b16 {vr(32 + 4*nt, 2)}, v21 offset:{5120*slot + 32*nt}")
        A(f"ds_read_b64_tr_b16 {vr(34 + 4*nt, 2)}, v22 offset:{5120*slot + 32*nt}")
    A(f"s_mul_i32 s40, s43, 68")
    A("s_add_u32 s39, s39, s40")
    A("s_mul_i32 s39, s39, 5120")
    A(f"s_add_u32 s39, s39, {F.WS_W2T}")
    A("s_add_u32 s40, s39, 4096")
    A("s_waitcnt lgkmcnt(0)")
    for nt in range(4):
        A(f"buffer_store_dwordx4 {vr(32 + 4*nt, 4)}, v2, s[24:27], s39 offen offset:{1024*nt} sc1")
    A(f"buffer_store_dwordx4 {vr(48, 4)}, v2, s[24:27], s40 offen sc1")
    A.label(sk)

def kv_poll(A, name, half):
    def setup(j):
        A(f"v_lshlrev_b32 v252, 2, v1")
        A(f"v_add_u32 v252, {F.FLG_KV + 256*half}, v252")
    F.poll_flags(A, setup, 1, name)

def service(A, name):
    W = F.S_W
    F.ln_setup(A)
    if_duty(A, kv_addr)
    F.after_kernarg(A)
    if F.CODEPF:
        A("s_getpc_b64 s[70:71]")
        A.label(f"L_{name}_pcref")
        A(f"s_sub_u32 s70, s70, L_{name}_pcref-{name}")
        A("s_subb_u32 s71, s71, 0")
        A("s_lshr_b32 s39, s2, 3")
        A(f"s_mul_i32 s39, s39, {F.CODEPF * 128}")
        A("v_lshlrev_b32 v222, 7, v1")
        A("v_add_u32 v222, s39, v222")
        A("v_mov_b32 v223, s71")
        A("v_add_co_u32 v222, vcc, s70, v222")
        A("s_nop 1")
        A("v_addc_co_u32 v223, vcc, 0, v223, vcc")
        A(f"v_cmp_gt_u32 vcc, {F.CODEPF}, v1")
        A("s_mov_b64 s[72:73], vcc")
        A(f"s_lshr_b32 s39, s2, 3")
        A(f"s_mul_i32 s39, s39, {F.CODEPF}")
        A("v_add_u32 v225, s39, v1")
        A(f"v_cmp_gt_u32 vcc, (L_{name}_end-{name})/128, v225")
        A("s_nop 3")
        A("s_and_b64 vcc, vcc, s[72:73]")
        A("s_and_saveexec_b64 s[70:71], vcc")
        A(f"s_cbranch_execz L_{name}_nopf")
        A("global_load_dword v224, v[222:223], off")
        A.label(f"L_{name}_nopf")
        A("s_mov_b64 exec, s[70:71]")
    F.x_loads(A)
    F.kvw_loads(A)
    srd(A, 72, 66, 67, 256)
    A("s_memrealtime s[70:71]")
    A("s_waitcnt lgkmcnt(0)")
    A("s_or_b32 s78, s70, 1")
    A("v_mov_b32 v170, s78")
    A("v_mov_b32 v171, 0")
    A("v_mov_b32 v172, 0")
    A("s_mov_b64 exec, 1")
    A("buffer_atomic_cmpswap v[170:171], v172, s[72:75], 0 offen sc0 sc1")
    A("s_mov_b64 exec, -1")
    F.wait_x(A, 1)
    F.layernorm(A)
    ntouch = 0
    if F.TOUCH:
        A("s_bfe_u32 s41, s2, 0x10002")
        A("s_lshr_b32 s42, s2, 3")
        for (per, rs, colb, sr, n) in ((5, 1280, 640, 12, 2), (12, 3072, 1536, 16, 4)):
            tot = 20 * per
            A(f"s_mul_i32 s43, s42, {20*rs}")
            A(f"s_mul_i32 s44, s41, {colb}")
            A("s_add_u32 s43, s43, s44")
            for i in range(n):
                A(f"v_add_u32 v7, {64*i}, v1")
                F.divmod_lane(A, 7, per, 64*n + 64, 8, 9)
                A(f"v_mul_u32_u24 v8, {rs}, v8")
                A(f"v_lshl_add_u32 v8, v9, 7, v8")
                A(f"v_cmp_gt_u32 vcc, {tot}, v7")
                A(f"v_mov_b32 v9, {F.BIG}")
                A("s_nop 0")
                A("v_cndmask_b32 v8, v9, v8, vcc")
                A(f"buffer_load_dword v{173 + ntouch}, v8, s[{sr}:{sr+3}], s43 offen")
                ntouch += 1
    nond = A.newlabel("svc_nonduty")
    A("s_cmp_eq_u32 s77, 0")
    A(f"s_cbranch_scc1 {nond}")
    A(f"s_waitcnt vmcnt({1 + ntouch}) lgkmcnt(0)")
    trace(A, 250)
    A("s_setprio 0")
    A("s_barrier")
    trace(A, 250)
    kv_reads(A)
    kv_mfma(A)
    for i in range(20):
        trace(A, 250, 2)
        A("s_barrier")
        if i == 1:
            kv_reduce_store(A)
        if i == 5:
            nonce_read(A, 0)
        if i == 5:
            A("s_waitcnt vmcnt(0)")
            F.publish(A, "KV")
        if i == 16: kv_poll(A, name, 0)
        if i in KV_SCHED: kv_pieces(A, KV_SCHED[i], 0)
    A(f"s_branch L_{name}_svcjoin")
    A.label(nond)
    for p in range(5):
        A(f"v_add_u32 v7, {64*p}, v1")
        F.divmod_lane(A, 7, 10, 320, 8, 9)
        A("v_mul_u32_u24 v8, 1280, v8")
        A(f"v_lshl_add_u32 v{24+p}, v9, 4, v8")
    A("v_lshrrev_b32 v16, 4, v1")
    A("v_bfe_u32 v17, v1, 2, 2")
    A("v_and_b32 v18, 3, v1")
    A("v_lshlrev_b32 v19, 3, v16")
    A("v_lshrrev_b32 v20, 1, v16")
    A("v_lshlrev_b32 v20, 4, v20")
    A("v_and_b32 v21, 1, v16")
    A("v_lshl_add_u32 v20, v21, 2, v20")
    for rr in (19, 20):
        A(f"v_add_u32 v{rr}, v{rr}, v17")
        A(f"v_mul_u32_u24 v{rr}, 160, v{rr}")
        A(f"v_lshl_add_u32 v{rr}, v18, 3, v{rr}")
        A(f"v_add_u32 v{rr}, {F.KVW}, v{rr}")
    A("s_waitcnt lgkmcnt(0)")
    trace(A, 250)
    A("s_setprio 0")
    A("s_barrier")
    trace(A, 250)
    for i in range(20):
        trace(A, 250, 2)
        A("s_barrier")
        if i == 3: nonce_read(A, 15)
        if i <= 4: t_dma(A, i, i)
        if 6 <= i <= 10:
            A("s_waitcnt vmcnt(15)")
            t_proc(A, i - 6, i - 6)
        if i == 11: t_dma(A, 5, 0)
        if i == 14:
            A("s_waitcnt vmcnt(0)")
            t_proc(A, 5, 0)
        if i == 16: kv_poll(A, name, 0)
        if i in KV_SCHED: kv_pieces(A, KV_SCHED[i], 0)
    A.label(f"L_{name}_svcjoin")
    after_loop_L(A, name, 0)

NL = 6
def loader(A, name):
    W = F.S_W
    isq = A.newlabel("isq"); dn = A.newlabel("setup_done")
    A(f"s_cmp_eq_u32 s{W}, 7")
    A(f"s_cbranch_scc1 {isq}")
    for i in range(6):
        A(f"s_sub_u32 s39, s{W}, 5")
        A("s_mul_i32 s39, s39, 384")
        A(f"s_add_u32 s39, s39, {64*i}")
        A("v_add_u32 v7, s39, v1")
        F.divmod_lane(A, 7, 24, 768, 8, 9)
        A("v_bfe_u32 v10, v8, 1, 1")
        A("v_lshlrev_b32 v10, 2, v10")
        A("v_xor_b32 v9, v9, v10")
        A("v_mul_u32_u24 v8, 3072, v8")
        A(f"v_lshl_add_u32 v{40+i}, v9, 4, v8")
    A(f"s_branch {dn}")
    A.label(isq)
    for i in range(6):
        A(f"v_add_u32 v7, {64*i}, v1")
        F.divmod_lane(A, 7, 12, 384, 8, 9)
        A("v_mul_u32_u24 v8, 1280, v8")
        A(f"v_lshl_add_u32 v{40+i}, v9, 4, v8")
        A("v_cmp_lt_u32 vcc, 9, v9")
        A(f"v_mov_b32 v10, {F.BIG}")
        A("s_nop 0")
        A(f"v_cndmask_b32 v{40+i}, v{40+i}, v10, vcc")
    A.label(dn)
    F.ln_setup(A)
    if_duty(A, kv_addr)
    F.after_kernarg(A)
    A(f"s_cmp_eq_u32 s{W}, 7")
    for j in range(4):
        A(f"s_cselect_b32 s{28+j}, s{12+j}, s{16+j}")
    A("s_movk_i32 s39, 160")
    A("s_cselect_b32 s46, s39, 384")
    A(f"s_mul_i32 s46, s46, s{F.S_CG}")
    A("s_mov_b32 s39, 40960")
    A("s_cselect_b32 s47, s39, 98304")
    A(f"s_sub_u32 s48, s{W}, 5")
    A("s_mul_i32 s48, s48, 6144")
    A(f"s_add_u32 s48, s48, {F.STG0}")
    def dma(stage):
        for i in range(6):
            A(f"s_add_u32 m0, s48, {stage*F.STG + 1024*i}")
            A("s_nop 0")
            A(f"buffer_load_dwordx4 v{40+i}, s[28:31], s46 offen lds")
        A("s_add_u32 s46, s46, s47")
    dma(0)
    F.x_loads(A)
    F.kvw_loads(A)
    dma(1)
    trace(A, 250, 2)
    F.wait_x(A, NL)
    trace(A, 250, 2)
    F.layernorm(A)
    dma(2)
    A(f"s_waitcnt vmcnt({2*NL}) lgkmcnt(0)")
    trace(A, 250)
    A("s_setprio 0")
    A("s_barrier")
    trace(A, 250)
    def pre0(A):
        kv_reads(A); kv_mfma(A)
        A(f"s_sub_u32 s39, s{W}, 5")
        A("s_lshl_b32 s39, s39, 12")
        A(f"s_add_u32 s39, s39, {F.KVW}")
        A("v_add_u32 v16, s39, v2")
    if_duty(A, pre0)
    for i in range(20):
        A(f"; iter {i}")
        A("__WAIT__%d" % i)
        trace(A, 250, 2)
        A("s_barrier")
        if i + 3 <= 19:
            dma(i % 3)
        if i == 0:
            def it0(A):
                A("s_nop 7")
                for j in range(4):
                    A(f"ds_write_b128 v16, {vr(64 + 4*j, 4)} offset:{1024*j}")
                A("s_waitcnt lgkmcnt(0)")
            if_duty(A, it0)
        if i == 7:
            A(f"v_mov_b32 v16, {F.SPARE}")
            A("ds_read_b32 v17, v16")
            A("s_waitcnt lgkmcnt(0)")
            A(f"v_readfirstlane_b32 s{F.S_NONCE}, v17")
        if i in KV_SCHED:
            done = A.newlabel("kvd")
            for l in (1, 2, 3):
                nx = A.newlabel("kvn")
                A(f"s_cmp_eq_u32 s{W}, {4+l}")
                A(f"s_cbranch_scc0 {nx}")
                kv_pieces(A, KV_SCHED[i], l)
                A(f"s_branch {done}")
                A.label(nx)
            A.label(done)
    after_loop_L(A, name, None)

def npieces(i, l):
    return len([1 for idx, q in enumerate(KV_SCHED[i]) if idx % 4 == l])

def fix_waits(text):
    out = []
    for ln in text.split("\n"):
        s = ln.strip()
        if s.startswith("__WAIT__"):
            i = int(s[8:])
            if i + 1 > 19:
                continue
            n = 0
            if i + 2 <= 19: n += NL
            for it in (i - 2, i - 1):
                if it in KV_SCHED:
                    n += min(npieces(it, l) for l in (1, 2, 3))
            out.append(f"    s_waitcnt vmcnt({min(n, 63)})")
        else:
            out.append(ln)
    return "\n".join(out)

def after_loop_L(A, name, l):
    W = F.S_W
    A("s_waitcnt vmcnt(0)")
    trace(A, 250)
    A("s_barrier")
    kv_poll(A, name, 1)
    if l == 0:
        kv_pieces(A, KV_A, 0)
    else:
        done = A.newlabel("kvd")
        for ll in (1, 2, 3):
            nx = A.newlabel("kvn")
            A(f"s_cmp_eq_u32 s{W}, {4+ll}")
            A(f"s_cbranch_scc0 {nx}")
            kv_pieces(A, KV_A, ll)
            A(f"s_branch {done}")
            A.label(nx)
        A.label(done)
    trace(A, 250)
    A("s_barrier")
    if l == 0:
        F.publish(A, "H")
        F.publish(A, "T")
    A("s_waitcnt vmcnt(0)")
    A("s_barrier")
    trace(A, 250)
    A(f"s_setprio {F.FFN_PRIO}")
    def setup(j):
        A(f"s_or_b32 s40, s{F.S_CG}, 4")
        A("s_lshl_b32 s40, s40, 8")
        A(f"s_add_u32 s40, s40, {F.FLG_T}")
        A(f"s_lshl_b32 s39, s{F.S_RB}, 8")
        A(f"s_add_u32 s39, s39, {F.FLG_H}")
        A("v_lshlrev_b32 v252, 2, v1")
        A("v_add_u32 v252, s40, v252")
        A("v_and_b32 v255, 7, v1")
        A("v_lshlrev_b32 v255, 2, v255")
        A("v_add_u32 v255, s39, v255")
        A("v_cmp_gt_u32 vcc, 32, v1")
        A("s_nop 1")
        A("v_cndmask_b32 v252, v255, v252, vcc")
    F.poll_flags(A, setup, 1, name)
    trace(A, 250)
    A(f"s_sub_u32 s42, s{W}, 4")
    A(f"s_mul_i32 s54, s{F.S_CG}, 68")
    A("s_add_u32 s54, s54, s42")
    A("s_add_u32 s54, s54, 20")
    A("s_mul_i32 s54, s54, 5120")
    A(f"s_add_u32 s54, s54, {F.WS_W2T}")
    for j in range(4):
        A(f"s_lshl_b32 s39, s{F.S_RB}, 2")
        A(f"s_add_u32 s39, s39, {j}")
        A("s_mul_i32 s39, s39, 48")
        A("s_add_u32 s39, s39, s42")
        A("s_lshl_b32 s39, s39, 10")
        A(f"s_add_u32 s{44+j}, s39, {F.WS_H}")
    def loads(i):
        b = FBUF[i % 4]
        A("s_add_u32 s55, s54, 4096")
        for nt in range(4):
            A(f"buffer_load_dwordx4 {vr(b + 4*nt, 4)}, v2, s[24:27], s54 offen offset:{1024*nt} sc1")
        A(f"buffer_load_dwordx4 {vr(b + 16, 4)}, v2, s[24:27], s55 offen sc1")
        for j in range(4):
            A(f"buffer_load_dwordx4 {vr(b + 20 + 4*j, 4)}, v2, s[24:27], s{44+j} offen sc1")
        A(f"s_add_u32 s54, s54, {4*5120}")
        for j in range(4):
            A(f"s_add_u32 s{44+j}, s{44+j}, 4096")
    N = 12
    NT = F.N_TAIL
    for i in range(3):
        loads(i)
    for r in range(80):
        A(f"v_mov_b32 v{FACC + r}, 0")
    for i in range(N):
        if i == N - NT:
            if i + 3 < N:
                loads(i + 3)
            F.xb_loads(A)
            A("s_barrier")
            if l == 0:
                F.publish(A, "O")
        elif i + 3 < N:
            loads(i + 3)
        later = min(N - 1, i + 3) - i
        extra = 1 if (l == 0 and i >= N - NT and i <= N - NT + 3) else 0
        xb = 10 if (NT > 0 and i >= N - NT and i + 3 >= N) else 0
        A(f"s_waitcnt vmcnt({9*later + xb})")
        trace(A, 250, 2 if i not in (0, N - NT, N - 1) else 1)
        b = FBUF[i % 4]
        for j in range(4):
            for nt in range(5):
                a = FACC + 20*j + 4*nt
                A(f"v_mfma_f32_16x16x32_bf16 {vr(a,4)}, {vr(b + 4*nt, 4)}, {vr(b + 20 + 4*j, 4)}, {vr(a,4)}")
    if NT == 0:
        F.xb_loads(A)
        A("s_barrier")
        if l == 0:
            F.publish(A, "O")
    A("s_setprio 0")
    trace(A, 250)
    trace_dump(A, 250, 0, 252)
    F.tail_common(A, name, is_L=True, l0=(l == 0))
```

```python
from asmlib import *
import asmlib, struct

WS_KV = 0
WS_H = 163840
WS_W2T = WS_H + 6291456
WS_O = WS_W2T + 2785280
WS_FLG = WS_O + 2621440
FLG_KV = WS_FLG
FLG_H = WS_FLG + 4096
FLG_T = WS_FLG + 16384
FLG_O = WS_FLG + 32768
WS_TR = WS_FLG + 98304
WS_SIZE = WS_TR + 256*8*2*256
asmlib.TR_BASE = WS_TR

QSCALE = (20 ** -0.5) * 1.4426950408889634
OFF = 88.0
VMASK = 0x000FFFFF
BIG = 0x40000000

def magic(d, maxp):
    for sh in range(8, 24):
        m = (1 << sh) // d + 1
        if m * maxp < (1 << 32) and m < (1 << 24) and all((p * m) >> sh == p // d for p in range(maxp + 1)):
            return m, sh
    raise Exception("no magic")
def f2u(x):
    return struct.unpack("<I", struct.pack("<f", x))[0]

STG0 = 81920
STG = 18432
R_WQ = 12288
KVW = STG0 + 3 * STG
SPARE = KVW + 25600
SPIN_LIMIT = 20000

S_RB, S_CG, S_W = 36, 37, 38
S_NONCE = 76
S_DUTY = 77
S_KVT = 79

def divmod_lane(A, src, d, maxp, q, r, tmp=None):
    m, s = magic(d, maxp)
    A(f"v_mul_u32_u24 v{q}, {m}, v{src}")
    A(f"v_lshrrev_b32 v{q}, {s}, v{q}")
    A(f"v_mul_u32_u24 v{r}, {d}, v{q}")
    A(f"v_sub_u32 v{r}, v{src}, v{r}")

def poll_flags(A, vaddr_setup, nloads, name):
    lp = A.newlabel("poll"); ok = A.newlabel("pollok")
    A("s_mov_b32 s59, 0")
    A.label(lp)
    for i in range(nloads):
        vaddr_setup(i)
        A(f"buffer_load_dword v{253+i}, v252, s[24:27], 0 offen sc1")
    A("s_waitcnt vmcnt(0)")
    A(f"v_xor_b32 v253, s{S_NONCE}, v253")
    for i in range(1, nloads):
        A(f"v_xor_b32 v{253+i}, s{S_NONCE}, v{253+i}")
        A(f"v_or_b32 v253, v253, v{253+i}")
    A("v_cmp_ne_u32 vcc, 0, v253")
    A("s_add_u32 s59, s59, 1")
    A("s_nop 3")
    A("s_cmp_eq_u64 vcc, 0")
    A(f"s_cbranch_scc1 {ok}")
    A(f"s_cmp_gt_u32 s59, {SPIN_LIMIT}")
    A(f"s_cbranch_scc1 {ok}")
    A("s_sleep 4")
    A(f"s_branch {lp}")
    A.label(ok)

def publish(A, kind):
    if kind == "KV":
        A(f"s_lshl_b32 s58, s{S_RB}, 2")
        A(f"s_add_u32 s58, s58, s{S_KVT}")
        A("s_lshl_b32 s58, s58, 2")
        A(f"s_add_u32 s58, s58, {FLG_KV}")
    elif kind in ("H", "O"):
        A(f"s_lshl_b32 s58, s{S_RB}, 6")
        A(f"s_add_u32 s58, s58, s{S_CG}")
        A("s_lshl_b32 s58, s58, 2")
        A(f"s_add_u32 s58, s58, {FLG_H if kind == 'H' else FLG_O}")
    else:
        A(f"s_lshl_b32 s58, s{S_CG}, 6")
        A(f"s_add_u32 s58, s58, s{S_RB}")
        A("s_lshl_b32 s58, s58, 2")
        A(f"s_add_u32 s58, s58, {FLG_T}")
    A("v_mov_b32 v252, 0")
    A(f"v_mov_b32 v253, s{S_NONCE}")
    A("s_mov_b64 exec, 1")
    A("buffer_store_dword v253, v252, s[24:27], s58 offen sc1")
    A("s_mov_b64 exec, -1")

def gen(name):
    A = Asm()
    A.label(name)
    if DBL0:
        A("s_memrealtime s[100:101]")
    A("s_cmp_ge_u32 s2, 256")
    A(f"s_cbranch_scc1 L_{name}_end")
    A("s_load_dwordx4 s[44:47], s[0:1], 0")
    A("s_load_dwordx4 s[48:51], s[0:1], 16")
    A("s_load_dwordx2 s[52:53], s[0:1], 32")
    A("s_load_dwordx4 s[56:59], s[0:1], 48")
    A("s_load_dwordx4 s[60:63], s[0:1], 64")
    A("s_load_dwordx4 s[64:67], s[0:1], 80")
    A("s_load_dwordx2 s[68:69], s[0:1], 96")
    A("s_and_b32 s39, s2, 7")
    A("s_lshr_b32 s40, s2, 3")
    A(f"s_and_b32 s{S_RB}, s39, 3")
    A(f"s_lshl_b32 s{S_RB}, s{S_RB}, 3")
    A("s_and_b32 s41, s40, 7")
    A(f"s_add_u32 s{S_RB}, s{S_RB}, s41")
    A("s_lshr_b32 s41, s39, 2")
    A(f"s_lshl_b32 s{S_CG}, s41, 2")
    A(f"s_lshr_b32 s{S_KVT}, s40, 3")
    A(f"s_add_u32 s{S_CG}, s{S_CG}, s{S_KVT}")
    A(f"s_xor_b32 s{S_DUTY}, s41, 1")
    A("v_lshrrev_b32 v2, 6, v0")
    A("v_and_b32 v1, 63, v0")
    A(f"v_readfirstlane_b32 s{S_W}, v2")
    A("v_lshrrev_b32 v3, 4, v1")
    A("v_and_b32 v4, 15, v1")
    A(f"s_lshl_b32 s39, s{S_W}, 3")
    A("v_add_u32 v5, s39, v3")
    A("v_mul_u32_u24 v249, 1280, v5")
    A("v_lshl_add_u32 v249, v4, 4, v249")
    A("s_nop 2")
    A(f"s_cmp_ge_u32 s{S_W}, 4")
    A(f"s_cbranch_scc1 L_{name}_roleL")
    role_C(A, name)
    A.label(f"L_{name}_roleL")
    role_L(A, name)
    A.label(f"L_{name}_end")
    A("s_endpgm")
    return A.text()

XR = 80
def ln_setup(A):
    A("v_mov_b32 v144, 0x3f803f80")
    for r in range(146, 154):
        A(f"v_mov_b32 v{r}, 0")
    for p in range(2):
        A(f"v_add_u32 v7, {4*p}, v5")
        A("v_and_b32 v8, 15, v7")
        A("v_xor_b32 v8, v8, v4")
        A("v_mul_u32_u24 v7, 1280, v7")
        A(f"v_lshl_add_u32 v{154+p}, v8, 4, v7")

def layernorm(A):
    for p in range(2):
        S, Qs = 146 + 4*p, 148 + 4*p
        for i in range(20):
            x = XR + 20*p + i
            A(f"v_dot2_f32_bf16 v{S + (i&1)}, v{x}, v144, v{S + (i&1)}")
            A(f"v_dot2_f32_bf16 v{Qs + (i&1)}, v{x}, v{x}, v{Qs + (i&1)}")
    A(f"s_mov_b32 s39, {f2u(1.0 / 640)}")
    A(f"s_mov_b32 s40, {f2u(1e-5)}")
    A("s_nop 1")
    for p in range(2):
        S, Qs = 146 + 4*p, 148 + 4*p
        A(f"v_add_f32 v{S}, v{S}, v{S+1}")
        A(f"v_add_f32 v{Qs}, v{Qs}, v{Qs+1}")
    for n, sh in enumerate((8, 4, 2, 1)):
        if n == 0: A("s_nop 0")
        for p in range(2):
            S, Qs = 146 + 4*p, 148 + 4*p
            A(f"v_add_f32_dpp v{S}, v{S}, v{S} row_ror:{sh} row_mask:0xf bank_mask:0xf")
            A(f"v_add_f32_dpp v{Qs}, v{Qs}, v{Qs} row_ror:{sh} row_mask:0xf bank_mask:0xf")
    for p in range(2):
        S, Qs = 146 + 4*p, 148 + 4*p
        A(f"v_mul_f32 v{S}, s39, v{S}")
        A(f"v_mul_f32 v{Qs}, s39, v{Qs}")
    for p in range(2):
        S, Qs = 146 + 4*p, 148 + 4*p
        A(f"v_fma_f32 v{Qs}, -v{S}, v{S}, v{Qs}")
    for p in range(2):
        S, Qs = 146 + 4*p, 148 + 4*p
        A(f"v_max_f32 v{Qs}, 0, v{Qs}")
    for p in range(2):
        S, Qs = 146 + 4*p, 148 + 4*p
        A(f"v_add_f32 v{Qs}, s40, v{Qs}")
    for p in range(2):
        S, Qs = 146 + 4*p, 148 + 4*p
        A(f"v_rsq_f32 v{Qs}, v{Qs}")
    A("s_nop 0")
    for p in range(2):
        S, Qs = 146 + 4*p, 148 + 4*p
        A(f"v_mul_f32 v{Qs+1}, -v{S}, v{Qs}")
    n = 0
    for p in range(2):
        P = 148 + 4*p
        for i in range(5):
            for j in range(4):
                x = XR + 20*p + 4*i + j
                t = 156 + 2*(n & 1); n += 1
                A(f"v_lshlrev_b32 v{t}, 16, v{x}")
                A(f"v_and_b32 v{t+1}, 0xffff0000, v{x}")
                A(f"v_pk_fma_f32 v[{t}:{t+1}], v[{t}:{t+1}], v[{P}:{P+1}], v[{P}:{P+1}] op_sel:[0,0,1] op_sel_hi:[1,0,1]")
                A(f"v_cvt_pk_bf16_f32 v{x}, v{t}, v{t+1}")
            A(f"ds_write_b128 v{154+p}, {vr(XR + 20*p + 4*i, 4)} offset:{256*i}")

def xaddr(A, dst0, tmp=16):
    A(f"v_and_b32 v{tmp}, 31, v1")
    A(f"v_lshrrev_b32 v{tmp+1}, 5, v1")
    A(f"v_and_b32 v{tmp+2}, 15, v{tmp}")
    A(f"v_xor_b32 v{tmp+2}, v{tmp+2}, v{tmp+1}")
    A(f"v_mul_u32_u24 v{tmp+3}, 1280, v{tmp}")
    A(f"v_lshl_add_u32 v{tmp+3}, v{tmp+2}, 4, v{tmp+3}")
    for k in range(8):
        A(f"v_xor_b32 v{dst0+k}, {k << 5}, v{tmp+3}")

def trlane(A, k, colb, tmp):
    A(f"v_lshrrev_b32 v{k}, 5, v1")
    A(f"v_bfe_u32 v{tmp}, v1, 2, 2")
    A(f"v_lshl_add_u32 v{k}, v{k}, 3, v{tmp}")
    A(f"v_bfe_u32 v{colb}, v1, 4, 1")
    A(f"v_lshlrev_b32 v{colb}, 5, v{colb}")
    A(f"v_and_b32 v{tmp+1}, 3, v1")
    A(f"v_lshl_add_u32 v{colb}, v{tmp+1}, 3, v{colb}")

from fused_c import role_C
from fused_l import role_L

def tail_common(A, name, is_L, l0=False):
    W = S_W
    FACC = 8
    PART = 102400
    TR = 100
    trace_init(A, TR)
    trace(A, TR)
    A("v_lshlrev_b32 v2, 4, v1")
    A(f"s_and_b32 s42, s{W}, 3")
    if not is_L:
        A(f"s_mul_i32 s39, s{S_CG}, 348160")
        A(f"s_add_u32 s39, s39, {WS_W2T}")
        A(f"s_lshl_b32 s40, s{W}, 10")
        A("s_add_u32 s39, s39, s40")
        for i in range(25):
            A(f"s_add_u32 m0, s40, {4096*i}")
            A(f"s_add_u32 s41, s39, {4096*i}")
            A(f"buffer_load_dwordx4 v2, s[24:27], s41 offen sc1 lds")
        for r in range(20):
            A(f"v_mov_b32 v{112 + r}, 0")
        A("s_barrier")
        A("s_waitcnt vmcnt(0)")
    else:
        A("s_nop 7")
        for dj in range(1, 4):
            A(f"s_add_u32 s39, s42, {dj}")
            A("s_and_b32 s39, s39, 3")
            A("s_mul_i32 s40, s39, 15360")
            A(f"s_add_u32 s40, s40, {PART + (3 - dj) * 5120}")
            A("v_add_u32 v90, s40, v2")
            done = A.newlabel("wdone")
            for j in range(4):
                nxt = A.newlabel("wn")
                A(f"s_cmp_eq_u32 s39, {j}")
                A(f"s_cbranch_scc0 {nxt}")
                for nt in range(5):
                    A(f"ds_write_b128 v90, {vr(FACC + 20*j + 4*nt, 4)} offset:{1024*nt}")
                A(f"s_branch {done}")
                A.label(nxt)
            A.label(done)
        done = A.newlabel("mdone")
        for j in range(4):
            nxt = A.newlabel("mn")
            A(f"s_cmp_eq_u32 s42, {j}")
            A(f"s_cbranch_scc0 {nxt}")
            for r in range(20):
                A(f"v_mov_b32 v{112 + r}, v{FACC + 20*j + r}")
            A(f"s_branch {done}")
            A.label(nxt)
        A.label(done)
        A("s_waitcnt lgkmcnt(0)")
        trace(A, TR)
        A("s_barrier")
        A("s_mul_i32 s40, s42, 15360")
        A(f"s_add_u32 s40, s40, {PART}")
        A("v_add_u32 v90, s40, v2")
        for idx in range(3):
            for nt in range(5):
                A(f"ds_read_b128 {vr(172 + 20*idx + 4*nt, 4)}, v90 offset:{5120*idx + 1024*nt}")
        A("s_waitcnt vmcnt(0) lgkmcnt(0)")
        for r in range(20):
            A(f"v_add_f32 v{112+r}, v{112+r}, v{172+r}")
            A(f"v_add_f32 v{192+r}, v{192+r}, v{212+r}")
        for r in range(20):
            A(f"v_add_f32 v{112+r}, v{112+r}, v{192+r}")
        for nt in range(5):
            for hw in range(2):
                xr = 232 + 2*nt + hw; br = (242 + 2*nt + hw) if nt < 4 else (6 + hw); a = 112 + 4*nt + 2*hw
                A(f"v_lshlrev_b32 v8, 16, v{xr}")
                A(f"v_and_b32 v9, 0xffff0000, v{xr}")
                A(f"v_lshlrev_b32 v10, 16, v{br}")
                A(f"v_and_b32 v11, 0xffff0000, v{br}")
                A(f"v_add_f32 v{a}, v{a}, v8")
                A(f"v_add_f32 v{a+1}, v{a+1}, v9")
                A(f"v_add_f32 v{a}, v{a}, v10")
                A(f"v_add_f32 v{a+1}, v{a+1}, v11")
        trace(A, TR)
        if l0:
            def setup(j):
                A(f"s_lshl_b32 s39, s{S_RB}, 8")
                A(f"s_add_u32 s39, s39, {FLG_O}")
                A("v_and_b32 v252, 7, v1")
                A("v_lshlrev_b32 v252, 2, v252")
                A("v_add_u32 v252, s39, v252")
            poll_flags(A, setup, 1, name)
    trace(A, TR)
    A(f"s_lshl_b32 s39, s{S_RB}, 2")
    A("s_add_u32 s39, s39, s42")
    A("s_mul_i32 s39, s39, 20")
    if is_L: A("s_add_u32 s39, s39, 10")
    A("s_lshl_b32 s39, s39, 10")
    A(f"s_add_u32 s39, s39, {WS_O}")
    base = 51200 if is_L else 0
    A(f"v_add_u32 v12, {base}, v2")
    A("s_barrier")
    trace(A, TR)
    for k in range(10):
        if k % 4 == 0 and k:
            A("s_add_u32 s39, s39, 4096")
        A(f"buffer_load_dwordx4 {vr(132 + 4*k, 4)}, v2, s[24:27], s39 offen offset:{1024*(k%4)} sc1")
    WB = (172, 192)
    def wreads(k):
        for nt in range(5):
            A(f"ds_read_b128 {vr(WB[k%2] + 4*nt, 4)}, v12 offset:{(k*5 + nt)*1024}")
    wreads(0)
    for k in range(10):
        if k + 1 < 10:
            wreads(k + 1)
        A(f"s_waitcnt vmcnt({9-k}) lgkmcnt({5 if k + 1 < 10 else 0})")
        for nt in range(5):
            a = 112 + 4*nt
            A(f"v_mfma_f32_16x16x32_bf16 {vr(a,4)}, {vr(WB[k%2] + 4*nt, 4)}, {vr(132 + 4*k, 4)}, {vr(a,4)}")
    A("s_mul_i32 s40, s42, 5120")
    A(f"s_add_u32 s40, s40, {PART}")
    A("v_add_u32 v90, s40, v2")
    A("s_nop 7")
    trace(A, TR)
    if not is_L:
        for nt in range(5):
            A(f"ds_write_b128 v90, {vr(112 + 4*nt, 4)} offset:{1024*nt}")
        A("s_waitcnt lgkmcnt(0)")
        A("s_barrier")
        trace(A, TR)
        trace_dump(A, TR, 1, 8)
        A("s_endpgm")
    else:
        A("s_barrier")
        for nt in range(5):
            A(f"ds_read_b128 {vr(172 + 4*nt, 4)}, v90 offset:{1024*nt}")
        A("s_waitcnt lgkmcnt(0)")
        for r in range(20):
            A(f"v_add_f32 v{112+r}, v{112+r}, v{172+r}")
        for nt in range(5):
            A(f"v_cvt_pk_bf16_f32 v{192 + 2*nt}, v{112 + 4*nt}, v{113 + 4*nt}")
            A(f"v_cvt_pk_bf16_f32 v{193 + 2*nt}, v{114 + 4*nt}, v{115 + 4*nt}")
            A(f"buffer_store_dwordx2 {vr(192 + 2*nt, 2)}, v5, s[16:19], s52 offen offset:{32*nt}")
        trace(A, TR)
        if HTL and l0:
            A("s_waitcnt vmcnt(0)")
            A("s_memrealtime s[98:99]")
            srd(A, 72, 66, 67, 256)
            for k, wg in enumerate((0, 4, 255, 100, 3, 251)):
                sk = A.newlabel("htl")
                A(f"s_cmp_eq_u32 s2, {wg}")
                A(f"s_cbranch_scc0 {sk}")
                A("s_waitcnt lgkmcnt(0)")
                A("v_mov_b32 v8, s100")
                A("v_mov_b32 v9, s98")
                A("v_mov_b32 v10, 0")
                A(f"buffer_store_dwordx2 v[8:9], v10, s[72:75], 0 offen offset:{16 + 8*k}")
                A.label(sk)
        if DBL and l0:
            sk = A.newlabel("dbl"); lp = A.newlabel("dbll")
            A("s_cmp_eq_u32 s2, 0")
            A(f"s_cbranch_scc0 {sk}")
            A("s_waitcnt vmcnt(0)")
            A("s_memrealtime s[98:99]")
            A("s_waitcnt lgkmcnt(0)")
            A("s_sub_u32 s97, s98, s100")
            A(f"s_mul_i32 s97, s97, {DBL}")
            A("s_add_u32 s97, s97, s98")
            A.label(lp)
            A("s_memrealtime s[98:99]")
            A("s_waitcnt lgkmcnt(0)")
            A("s_cmp_lt_u32 s98, s97")
            A(f"s_cbranch_scc1 {lp}")
            A.label(sk)
        if asmlib.TRACE:
            A("s_waitcnt vmcnt(0)")
            trace(A, TR)
            trace_dump(A, TR, 1, 8)
        A("s_endpgm")


def wait_x(A, later):
    l1 = A.newlabel("wx1"); l2 = A.newlabel("wx2")
    A(f"s_cmp_eq_u32 s{S_DUTY}, 0")
    A(f"s_cbranch_scc1 {l1}")
    A(f"s_waitcnt vmcnt({later + 4})")
    A(f"s_branch {l2}")
    A.label(l1)
    A(f"s_waitcnt vmcnt({later})")
    A.label(l2)
FFN_PRIO = 0
DBL0 = 0
DBL = 0
TLBPF = 0
CODEPF = 0
HTL = 0
N_D2 = 3
L_PRIO_A = 2
TOUCH = 1
N_TAIL = 6


def after_kernarg(A):
    A("s_waitcnt lgkmcnt(0)")
    trace_init(A, 250)
    trace(A, 250)
    if (HTL or DBL) and not DBL0:
        A("s_memrealtime s[100:101]")
        A("s_waitcnt lgkmcnt(0)")
    srd(A, 8, 44, 45, 2621440)
    srd(A, 12, 46, 47, 819200)
    srd(A, 16, 56, 57, 1966080)
    srd(A, 24, 68, 69, WS_SIZE)
    srd(A, 32, 58, 59, 3072)
    A(f"s_cmp_lt_u32 s{S_KVT}, 2")
    A("s_cselect_b32 s20, s48, s50")
    A("s_cselect_b32 s21, s49, s51")
    A("s_mov_b32 s22, 25600")
    A("s_mov_b32 s23, 0x00020000")

def x_loads(A):
    A(f"s_mul_i32 s39, s{S_RB}, 81920")
    A("s_add_u32 s40, s39, 5120")
    for p in range(2):
        for i in range(5):
            A(f"buffer_load_dwordx4 {vr(XR + 20*p + 4*i, 4)}, v249, s[8:11], s{39+p} offen offset:{256*i}")

def kvw_loads(A):
    nd = A.newlabel("nokvw")
    A(f"s_cmp_eq_u32 s{S_DUTY}, 0")
    A(f"s_cbranch_scc1 {nd}")
    A("v_lshlrev_b32 v255, 4, v1")
    A(f"s_lshl_b32 s39, s{S_W}, 10")
    for i in range(4):
        A(f"s_add_u32 m0, s39, {KVW + 8192*i}")
        A(f"s_add_u32 s40, s39, {8192*i}")
        A(f"buffer_load_dwordx4 v255, s[20:23], s40 offen lds")
    A.label(nd)


def xb_loads(A):
    W = S_W
    srd(A, 12, 62, 63, 1280)
    srd(A, 16, 64, 65, 2621440)
    A(f"s_and_b32 s43, s{W}, 3")
    A("v_and_b32 v3, 15, v1")
    A("v_lshrrev_b32 v4, 4, v1")
    A("v_mul_u32_u24 v5, 1280, v3")
    A("v_lshl_add_u32 v5, v4, 3, v5")
    A("v_lshlrev_b32 v6, 3, v4")
    A(f"s_lshl_b32 s39, s{S_RB}, 2")
    A("s_add_u32 s39, s39, s43")
    A("s_mul_i32 s39, s39, 20480")
    A(f"s_mul_i32 s40, s{S_CG}, 160")
    A("s_add_u32 s52, s39, s40")
    A("s_mov_b32 s53, s40")
    for nt in range(5):
        A(f"buffer_load_dwordx2 {vr(232 + 2*nt, 2)}, v5, s[8:11], s52 offen offset:{32*nt}")
    for nt in range(4):
        A(f"buffer_load_dwordx2 {vr(242 + 2*nt, 2)}, v6, s[12:15], s53 offen offset:{32*nt}")
    A(f"buffer_load_dwordx2 v[6:7], v6, s[12:15], s53 offen offset:128")
```

```python
from asmlib import *
import fused as F

ACCQ, ACCH, BIAS = 128, 160, 208
SETS = (32, 80)
SA, SB, PA, PB, OA, OB, CA, CB = 32, 48, 64, 72, 80, 96, 112, 128
K1, K2, V1, V2 = 144, 148, 152, 156
Q1A, Q1B, Q2A, Q2B = 208, 212, 216, 218
MA, MB = 5, 6

def qk(S, Q1, Q2, C):
    c = "0" if C is None else vr(C, 16)
    return [f"v_mfma_f32_32x32x16_bf16 {vr(S,16)}, {vr(K1,4)}, {vr(Q1,4)}, {c}",
            f"v_mfma_f32_32x32x8_bf16 {vr(S,16)}, {vr(K2,2)}, {vr(Q2,2)}, {vr(S,16)}"]
def pv(O, P):
    return [f"v_mfma_f32_32x32x16_bf16 {vr(O,16)}, {vr(V1,4)}, {vr(P,4)}, {vr(O,16)}",
            f"v_mfma_f32_32x32x16_bf16 {vr(O,16)}, {vr(V2,4)}, {vr(P+4,4)}, {vr(O,16)}"]
def readK1(A, off): A(f"ds_read_b128 {vr(K1,4)}, v2 offset:{off}")
def readK2(A, off): A(f"ds_read_b64 {vr(K2,2)}, v3 offset:{off}")
def readV(A, off):
    A("s_mov_b64 exec, s[60:61]")
    A(f"ds_read_b128 {vr(V1,4)}, v4 offset:{off}")
    A(f"ds_read_b128 {vr(V2,4)}, v4 offset:{off + 640}")
    A("s_mov_b64 exec, -1")
def half(A, S, P, ms, hooks):
    e = [f"v_exp_f32 v{S+i}, v{S+i}" for i in range(16)]
    c = [f"v_cvt_pk_bf16_f32 v{P+i}, v{S+2*i}, v{S+2*i+1}" for i in range(8)]
    def M(i):
        if ("pre", i) in hooks: hooks[("pre", i)]()
        A(ms[i])
        if i in hooks: hooks[i]()
    M(0)
    for x in e[0:4]: A(x)
    M(1)
    for x in e[4:8]: A(x)
    A(c[0]); A(c[1])
    M(2)
    for x in e[8:12]: A(x)
    A(c[2]); A(c[3])
    M(3)
    for x in e[12:16]: A(x)
    for x in c[4:8]: A(x)
def rowmax16(A, S, dst, first):
    if first:
        A(f"v_max3_f32 v{dst}, v{S}, v{S+1}, v{S+2}")
        i = 3
    else:
        i = 0
    while i + 1 < 16:
        A(f"v_max3_f32 v{dst}, v{dst}, v{S+i}, v{S+i+1}")
        i += 2
    if i < 16:
        A(f"v_max_f32 v{dst}, v{dst}, v{S+i}")
def crossmax(A, M):
    A(f"v_mov_b32 v7, v{M}")
    A("s_nop 1")
    A(f"v_permlane32_swap_b32 v7, v{M}")
    A("s_nop 1")
    A(f"v_max_f32 v{M}, v{M}, v7")
def kv_addr_init(A):
    A("v_lshlrev_b32 v2, 4, v1")
    A(f"v_add_u32 v2, {F.STG0}, v2")
    A("v_and_b32 v7, 31, v1")
    A("v_lshlrev_b32 v3, 3, v7")
    A(f"v_add_u32 v3, {F.STG0 + 1024}, v3")
    A("v_lshrrev_b32 v8, 5, v1")
    A("v_mul_u32_u24 v4, 320, v8")
    A("v_lshl_add_u32 v4, v7, 4, v4")
    A(f"v_add_u32 v4, {F.STG0 + 40960}, v4")

def role_C(A, name):
    W = F.S_W
    F.ln_setup(A)
    F.xaddr(A, 2)
    A(f"s_and_b32 s41, s{W}, 1")
    A("s_mul_i32 s42, s41, 40960")
    A("s_sub_u32 s43, 40960, s42")
    for k in range(8):
        A(f"v_add_u32 v{18+k}, s43, v{2+k}")
    for k in range(8):
        A(f"v_add_u32 v{2+k}, s42, v{2+k}")
    F.trlane(A, 26, 27, 28)
    A("v_mul_u32_u24 v10, 192, v26")
    A("v_add_u32 v10, v10, v27")
    A(f"s_mul_i32 s39, s{W}, 40")
    A(f"s_add_u32 s39, s39, {F.STG0 + F.R_WQ}")
    A("v_add_u32 v10, s39, v10")
    A("v_lshrrev_b32 v29, 1, v28")
    A(f"s_lshr_b32 s40, s{W}, 1")
    A("s_mul_i32 s40, s40, 3")
    for i in range(3):
        A(f"s_add_u32 s39, s40, {i}")
        A(f"v_xor_b32 v30, s39, v29")
        A(f"v_mul_u32_u24 v{11+i}, 384, v26")
        A(f"v_lshl_add_u32 v{11+i}, v30, 6, v{11+i}")
        A(f"v_add_u32 v{11+i}, v{11+i}, v27")
        A(f"v_add_u32 v{11+i}, {F.STG0}, v{11+i}")
    F.after_kernarg(A)
    A(f"s_mul_i32 s39, s{F.S_CG}, 384")
    A(f"s_lshr_b32 s40, s{W}, 1")
    A("s_mul_i32 s40, s40, 192")
    A("s_add_u32 s39, s39, s40")
    A("v_lshrrev_b32 v254, 5, v1")
    A("v_lshlrev_b32 v254, 3, v254")
    for i in range(3):
        for q in range(4):
            A(f"buffer_load_dwordx2 {vr(BIAS + 8*i + 2*q, 2)}, v254, s[32:35], s39 offen offset:{64*i + 16*q}")
    F.x_loads(A)
    F.kvw_loads(A)
    trace(A, 250)
    F.wait_x(A, 0)
    trace(A, 250, 3)
    F.layernorm(A)
    for i in range(3):
        for q in range(4):
            a = ACCH + 16*i + 4*q
            b = BIAS + 8*i + 2*q
            A(f"v_lshlrev_b32 v{a}, 16, v{b}")
            A(f"v_and_b32 v{a+1}, 0xffff0000, v{b}")
            A(f"v_lshlrev_b32 v{a+2}, 16, v{b+1}")
            A(f"v_and_b32 v{a+3}, 0xffff0000, v{b+1}")
    for r in range(32):
        A(f"v_mov_b32 v{ACCQ+r}, 0")
    def setstage():
        for i in range(4):
            A(f"v_add_u32 v{26+i}, s44, v{10+i}")
    def reads(cs, st):
        L = []
        b = SETS[st]
        for ks in range(2):
            xa = 2*cs + ks
            L.append(f"ds_read_b128 {vr(b + 8*ks, 4)}, v{2+xa}")
            L.append(f"ds_read_b128 {vr(b + 8*ks + 4, 4)}, v{18+xa}")
            L.append(f"ds_read_b64_tr_b16 {vr(b + 16 + 4*ks, 2)}, v26 offset:{16*ks*192}")
            L.append(f"ds_read_b64_tr_b16 {vr(b + 18 + 4*ks, 2)}, v26 offset:{(16*ks+4)*192}")
            for i in range(3):
                L.append(f"ds_read_b64_tr_b16 {vr(b + 24 + 12*ks + 4*i, 2)}, v{27+i} offset:{16*ks*384}")
                L.append(f"ds_read_b64_tr_b16 {vr(b + 26 + 12*ks + 4*i, 2)}, v{27+i} offset:{(16*ks+4)*384}")
        return L
    def mfmas(st):
        L = []
        b = SETS[st]
        for ks in range(2):
            for i in range(3):
                a = ACCH + 16*i
                L.append(f"v_mfma_f32_32x32x16_bf16 {vr(a,16)}, {vr(b + 24 + 12*ks + 4*i, 4)}, {vr(b + 8*ks, 4)}, {vr(a,16)}")
            for s in range(2):
                a = ACCQ + 16*s
                L.append(f"v_mfma_f32_32x32x16_bf16 {vr(a,16)}, {vr(b + 16 + 4*ks, 4)}, {vr(b + 8*ks + 4*s, 4)}, {vr(a,16)}")
        return L
    A("s_mov_b32 s44, 0")
    setstage()
    A("s_waitcnt vmcnt(0) lgkmcnt(0)")
    trace(A, 250)
    A("s_barrier")
    trace(A, 250)
    for ln in reads(0, 0): A(ln)
    def nextstage():
        A(f"s_add_u32 s44, s44, {F.STG}")
        A(f"s_cmp_eq_u32 s44, {3*F.STG}")
        A("s_cselect_b32 s44, 0, s44")
        setstage()
    nextstage()
    A("s_mov_b32 s43, 5")
    lp = A.newlabel("gemm1")
    A.label(lp)
    for s in range(4):
        st = s % 2
        A("s_waitcnt lgkmcnt(0)")
        A("s_barrier")
        trace(A, 250, 3)
        ms = mfmas(st)
        rd = reads((s + 1) % 4, 1 - st)
        tailops = []
        for i, m in enumerate(ms):
            A(m)
            for ln in rd[3*i:3*i+3]: A(ln)
            if i == 7:
                nextstage()
            if s == 2 and i in (7, 8):
                for k in range(8*(i-7), 8*(i-7)+8):
                    r = 2 + k if k < 8 else 18 + (k - 8)
                    A(f"v_add_u32 v{r}, 256, v{r}")
    A("s_sub_u32 s43, s43, 1")
    A("s_cmp_lg_u32 s43, 0")
    A(f"s_cbranch_scc1 {lp}")
    A("s_waitcnt lgkmcnt(0)")
    trace(A, 250)
    A("s_nop 15")
    A("s_nop 3")
    A("v_lshrrev_b32 v17, 5, v1")
    A("v_cmp_eq_u32 s[62:63], 0, v17")
    A(f"s_mov_b32 s40, {F.f2u(F.QSCALE)}")
    for s, (Q1, Q2) in enumerate(((Q1A, Q2A), (Q1B, Q2B))):
        a = ACCQ + 16*s
        for r in range(12):
            A(f"v_mul_f32 v{a+r}, s40, v{a+r}")
        for j in range(4):
            A(f"v_cvt_pk_bf16_f32 v{Q1+j}, v{a+2*j}, v{a+2*j+1}")
        for j in range(2):
            A(f"v_cvt_pk_bf16_f32 v{Q2+j}, v{a+8+2*j}, v{a+9+2*j}")
            A(f"v_cndmask_b32 v{Q2+j}, 0, v{Q2+j}, s[62:63]")
    A("v_and_b32 v16, 31, v1")
    A("v_lshrrev_b32 v18, 4, v16")
    A("v_mul_u32_u24 v18, 49152, v18")
    A("v_and_b32 v19, 15, v16")
    A("v_lshl_add_u32 v19, v17, 4, v19")
    A("v_lshl_add_u32 v18, v19, 4, v18")
    A(f"s_lshl_b32 s39, s{F.S_RB}, 2")
    A(f"s_and_b32 s41, s{W}, 1")
    A("s_lshl_b32 s40, s41, 1")
    A("s_add_u32 s39, s39, s40")
    A("s_mul_i32 s39, s39, 48")
    A(f"s_mul_i32 s40, s{F.S_CG}, 6")
    A("s_add_u32 s39, s39, s40")
    A(f"s_lshr_b32 s40, s{W}, 1")
    A("s_mul_i32 s40, s40, 3")
    A("s_add_u32 s39, s39, s40")
    A("s_lshl_b32 s39, s39, 10")
    A(f"s_add_u32 s39, s39, {F.WS_H}")
    for i in range(3):
        a = ACCH + 16*i
        for r in range(16):
            A(f"v_max_f32 v{a+r}, 0, v{a+r}")
        for r in range(0, 16, 2):
            A(f"v_pk_mul_f32 v[{a+r}:{a+r+1}], v[{a+r}:{a+r+1}], v[{a+r}:{a+r+1}]")
        for u in range(2):
            d = 220 + 8*i + 4*u
            for j in range(4):
                A(f"v_cvt_pk_bf16_f32 v{d + j}, v{a + 8*u + 2*j}, v{a + 8*u + 2*j + 1}")
            A(f"buffer_store_dwordx4 {vr(d, 4)}, v18, s[24:27], s39 offen offset:{1024*i + 512*u} sc1")
    kv_addr_init(A)
    A(f"s_mov_b32 s60, {F.VMASK}")
    A(f"s_mov_b32 s61, {F.VMASK}")
    A("v_and_b32 v7, 31, v1")
    A("v_cmp_eq_u32 vcc, 20, v7")
    A("v_mov_b32 v12, 0x3f803f80")
    A("s_nop 0")
    for r in range(8):
        A(f"v_cndmask_b32 v{V1+r}, 0, v12, vcc")
    A("s_mov_b32 s50, 0")
    trace(A, 250)
    A("s_barrier")
    readK1(A, 0); readK2(A, 0)
    A("ds_read_b128 v[160:163], v2 offset:1280")
    A("ds_read_b64 v[164:165], v3 offset:1280")
    A("s_waitcnt lgkmcnt(2)")
    for m in qk(SA, Q1A, Q2A, None): A(m)
    for m in qk(SB, Q1B, Q2B, None): A(m)
    A("s_waitcnt lgkmcnt(0)")
    for (S, Q1, Q2) in ((OA, Q1A, Q2A), (OB, Q1B, Q2B)):
        A(f"v_mfma_f32_32x32x16_bf16 {vr(S,16)}, v[160:163], {vr(Q1,4)}, 0")
        A(f"v_mfma_f32_32x32x8_bf16 {vr(S,16)}, v[164:165], {vr(Q2,2)}, {vr(S,16)}")
    A("s_nop 7")
    rowmax16(A, SA, MA, True)
    rowmax16(A, SB, MB, True)
    A("s_nop 7")
    rowmax16(A, OA, MA, False)
    rowmax16(A, OB, MB, False)
    for M in (MA, MB):
        crossmax(A, M)
        A(f"v_add_f32 v{M}, {F.f2u(F.OFF)}, v{M}")
    lmain = A.newlabel("main")
    A.label(lmain)
    for M, C in ((MA, CA), (MB, CB)):
        A(f"v_sub_f32 v{C}, 0, v{M}")
        for r in range(1, 16):
            A(f"v_mov_b32 v{C+r}, v{C}")
    for r in range(16):
        A(f"v_mov_b32 v{OA+r}, 0")
        A(f"v_mov_b32 v{OB+r}, 0")
    for r in range(8):
        A(f"v_mov_b32 v{PB+r}, 0")
    readK1(A, 0); readK2(A, 0)
    readV(A, 0)
    A("s_waitcnt lgkmcnt(0)")
    for m in qk(SA, Q1A, Q2A, CA): A(m)
    A("s_nop 15")
    A("s_mov_b32 s51, 0")
    trace(A, 250)
    lp = A.newlabel("att")
    A.label(lp)
    A("s_cmp_eq_u32 s51, 7")
    A(f"s_mov_b32 s52, {(-(F.STG0 + 28*1280)) & 0xffffffff}")
    A("s_cselect_b32 s52, s52, 5120")
    U = 4
    for t in range(U):
        o = 1280*t
        ms = qk(SB, Q1B, Q2B, CB) + pv(OB, PB)
        if t < U - 1:
            hk1 = (lambda o=o: readK1(A, o + 1280)); hk2 = (lambda o=o: readK2(A, o + 1280))
        else:
            def hk1():
                A("v_add_u32 v2, s52, v2")
                readK1(A, 0)
            def hk2():
                A("v_add_u32 v3, s52, v3")
                readK2(A, 0)
        hooks = {0: hk1, 1: hk2, 3: (lambda o=o: readV(A, o))}
        half(A, SA, PA, ms, hooks)
        ms = qk(SA, Q1A, Q2A, CA) + pv(OA, PA)
        hooks = {("pre", 0): (lambda: A("s_waitcnt lgkmcnt(2)")), ("pre", 2): (lambda: A("s_waitcnt lgkmcnt(0)"))}
        half(A, SB, PB, ms, hooks)
    A("v_add_u32 v4, s52, v4")
    trace(A, 250, 3)
    nb = A.newlabel("nod1")
    A("s_cmp_eq_u32 s51, 0")
    A(f"s_cbranch_scc0 {nb}")
    A("s_cmp_eq_u32 s50, 0")
    A(f"s_cbranch_scc0 {nb}")
    A("s_waitcnt vmcnt(0)")
    A("s_barrier")
    A.label(nb)
    nb2 = A.newlabel("nod2")
    A("s_cmp_eq_u32 s51, 2")
    A(f"s_cbranch_scc0 {nb2}")
    A("s_cmp_eq_u32 s50, 0")
    A(f"s_cbranch_scc0 {nb2}")
    A("s_barrier")
    A.label(nb2)
    A("s_add_u32 s51, s51, 1")
    A("s_cmp_lg_u32 s51, 16")
    A(f"s_cbranch_scc1 {lp}")
    A("s_nop 1")
    for m in pv(OB, PB): A(m)
    A("s_waitcnt lgkmcnt(0)")
    kv_addr_init(A)
    A("s_nop 15")
    A("s_nop 3")
    trace(A, 250)
    lok = A.newlabel("ok")
    A("v_mov_b32 v7, 0")
    for O in (OA, OB):
        for r in range(12):
            A(f"v_fma_f32 v7, v{O+r}, 0, v7")
    A("v_cmp_u_f32 vcc, v7, v7")
    A("s_cmp_lg_u32 s50, 0")
    A(f"s_cbranch_scc1 {lok}")
    A("s_nop 3")
    A("s_cmp_eq_u64 vcc, 0")
    A(f"s_cbranch_scc1 {lok}")
    A("s_mov_b32 s50, 1")
    A(f"v_mov_b32 v{MA}, 0xff800000")
    A(f"v_mov_b32 v{MB}, 0xff800000")
    A("s_mov_b32 s51, 0")
    lf = A.newlabel("fb")
    A.label(lf)
    readK1(A, 0); readK2(A, 0)
    A("s_waitcnt lgkmcnt(0)")
    for m in qk(SA, Q1A, Q2A, None): A(m)
    for m in qk(SB, Q1B, Q2B, None): A(m)
    A("s_nop 15")
    A("s_nop 3")
    rowmax16(A, SA, MA, False)
    rowmax16(A, SB, MB, False)
    A("s_cmp_eq_u32 s51, 31")
    A(f"s_mov_b32 s52, {(-(F.STG0 + 31*1280)) & 0xffffffff}")
    A("s_cselect_b32 s52, s52, 1280")
    A("v_add_u32 v2, s52, v2")
    A("v_add_u32 v3, s52, v3")
    A("s_add_u32 s51, s51, 1")
    A("s_cmp_lg_u32 s51, 64")
    A(f"s_cbranch_scc1 {lf}")
    kv_addr_init(A)
    crossmax(A, MA)
    crossmax(A, MB)
    A(f"s_branch {lmain}")
    A.label(lok)
    A("v_and_b32 v7, 31, v1")
    A("v_lshrrev_b32 v8, 4, v7")
    A("v_mul_u32_u24 v8, 20480, v8")
    A("v_and_b32 v9, 15, v7")
    A("v_lshl_add_u32 v8, v9, 4, v8")
    A(f"s_lshl_b32 s53, s{F.S_CG}, 2")
    A(f"s_add_u32 s53, s53, s{W}")
    A("s_mul_i32 s53, s53, 20")
    offs = []
    for q in range(3):
        for h in range(2):
            d = 54 + h
            A(f"s_add_u32 s56, s53, {8*q + 4*h}")
            A(f"s_lshr_b32 s{d}, s56, 5")
            A(f"s_lshl_b32 s{d}, s{d}, 10")
            A(f"s_bfe_u32 s57, s56, 0x20003")
            A(f"s_lshl_b32 s57, s57, 8")
            A(f"s_add_u32 s{d}, s{d}, s57")
            A(f"s_and_b32 s57, s56, 7")
            A(f"s_lshl_b32 s57, s57, 1")
            A(f"s_add_u32 s{d}, s{d}, s57")
        if q == 2:
            A(f"s_mov_b32 s55, {F.BIG}")
        A("v_mov_b32 v9, s55")
        A("v_mov_b32 v10, s54")
        A(f"v_cndmask_b32 v{13+q}, v9, v10, s[62:63]")
        A(f"v_add_u32 v{13+q}, v{13+q}, v8")
    for s, O in enumerate((OA, OB)):
        A(f"v_mov_b32 v9, v{O+8}")
        A(f"v_mov_b32 v10, v{O+8}")
        A("s_nop 1")
        A("v_permlane32_swap_b32 v9, v10")
        A("s_nop 1")
        A("v_rcp_f32 v10, v10")
        A("s_nop 0")
        for r in range(12):
            A(f"v_mul_f32 v{O+r}, v{O+r}, v10")
        for j in range(6):
            A(f"v_cvt_pk_bf16_f32 v{SA + 8*s + j}, v{O+2*j}, v{O+2*j+1}")
        A(f"s_and_b32 s52, s{W}, 1")
        A(f"s_xor_b32 s52, s52, {s}")
        A("s_lshl_b32 s52, s52, 1")
        A(f"s_lshl_b32 s56, s{F.S_RB}, 2")
        A("s_add_u32 s52, s52, s56")
        A("s_mul_i32 s52, s52, 20480")
        A(f"s_add_u32 s52, s52, {F.WS_O}")
        for q in range(3):
            A(f"buffer_store_dwordx2 {vr(SA + 8*s + 2*q, 2)}, v{13+q}, s[24:27], s52 offen sc1")
    trace(A, 250)
    A("s_waitcnt vmcnt(0)")
    trace(A, 250)
    trace_dump(A, 250, 0, 8)
    A("s_barrier")
    F.tail_common(A, name, is_L=False)
```

```python
from asmlib import *
import fused as F

FACC = 8
FBUF = [88 + 36*i for i in range(4)]

def kv_pieces(A, qs, l):
    n = 0
    for idx, q in enumerate(qs):
        if idx % 4 != l: continue
        lds = (q * 1024 + F.STG0) if q < 80 else (q - 80) * 1024
        A(f"s_mov_b32 m0, {lds}")
        A(f"s_mov_b32 s58, {F.WS_KV + q*1024}")
        A(f"buffer_load_dwordx4 v2, s[24:27], s58 offen sc1 lds")
        n += 1
    return n

KV_SCHED = {17: list(range(36, 80)), 18: list(range(0, 18)), 19: list(range(18, 36))}
KV_A = list(range(80, 160))

def kv_addr(A):
    W = F.S_W
    A(f"s_sub_u32 s39, s{W}, 4")
    A("s_mul_i32 s39, s39, 10")
    A(f"s_and_b32 s40, s{F.S_KVT}, 1")
    A("s_mul_i32 s40, s40, 40960")
    A("v_and_b32 v20, 31, v1")
    A("v_lshrrev_b32 v21, 5, v1")
    A("v_and_b32 v22, 15, v20")
    A("v_xor_b32 v22, v22, v21")
    A("v_mul_u32_u24 v16, 1280, v20")
    A("v_lshl_add_u32 v16, v22, 4, v16")
    F.trlane(A, 20, 21, 22)
    A("v_mul_u32_u24 v17, 40, v20")
    A("v_add_u32 v17, v17, v21")
    A(f"v_add_u32 v17, {F.KVW}, v17")
    for m in range(10):
        A(f"s_add_u32 s41, s39, {m}")
        A("s_and_b32 s42, s41, 7")
        A("s_lshl_b32 s42, s42, 5")
        A("s_lshr_b32 s43, s41, 3")
        A("s_lshl_b32 s43, s43, 8")
        A("s_add_u32 s43, s43, s40")
        A(f"v_xor_b32 v{46+m}, s42, v16")
        A(f"v_add_u32 v{46+m}, s43, v{46+m}")
        A("s_mul_i32 s41, s41, 640")
        A(f"v_add_u32 v{160+m}, s41, v17")
    for r in range(16):
        A(f"v_mov_b32 v{64+r}, 0")
def kv_reads(A):
    for m in range(10):
        b = 80 + 8*m
        A(f"ds_read_b128 {vr(b,4)}, v{46+m}")
        A(f"ds_read_b64_tr_b16 {vr(b+4,2)}, v{160+m}")
        A(f"ds_read_b64_tr_b16 {vr(b+6,2)}, v{160+m} offset:160")
def kv_mfma(A):
    A("s_waitcnt lgkmcnt(0)")
    for m in range(10):
        b = 80 + 8*m
        A(f"v_mfma_f32_32x32x16_bf16 v[64:79], {vr(b+4,4)}, {vr(b,4)}, v[64:79]")
def if_duty(A, fn):
    sk = A.newlabel("nd")
    A("s_cmp_eq_u32 s77, 0")
    A(f"s_cbranch_scc1 {sk}")
    fn(A)
    A.label(sk)

def role_L(A, name):
    W = F.S_W
    A(f"s_setprio {F.L_PRIO_A}")
    A("v_lshlrev_b32 v2, 4, v1")
    A(f"s_cmp_eq_u32 s{W}, 4")
    A(f"s_cbranch_scc0 L_{name}_loader")
    service(A, name)
    A.label(f"L_{name}_loader")
    loader(A, name)

def common_after_loop(A, name, l_is0):
    pass

def kv_reduce_store(A):
    A(f"v_add_u32 v16, {F.KVW}, v2")
    for j in range(12):
        A(f"ds_read_b128 {vr(80 + 4*j, 4)}, v16 offset:{1024*j}")
    A("s_waitcnt lgkmcnt(0)")
    for r in range(16):
        A(f"v_add_f32 v{64+r}, v{64+r}, v{80+r}")
        A(f"v_add_f32 v{96+r}, v{96+r}, v{112+r}")
    for r in range(16):
        A(f"v_add_f32 v{64+r}, v{64+r}, v{96+r}")
    for j in range(6):
        A(f"v_cvt_pk_bf16_f32 v{48+j}, v{64+2*j}, v{65+2*j}")
    A(f"s_lshl_b32 s39, s{F.S_RB}, 1")
    A(f"s_and_b32 s40, s{F.S_KVT}, 1")
    A("s_add_u32 s39, s39, s40")
    A("s_lshr_b32 s40, s39, 5")
    A("s_mul_i32 s40, s40, 81920")
    A("s_and_b32 s39, s39, 31")
    A("s_mul_i32 s39, s39, 1280")
    A("s_add_u32 s39, s39, s40")
    if F.WS_KV: A(f"s_add_u32 s39, s39, {F.WS_KV}")
    A("v_and_b32 v16, 31, v1")
    A("v_lshrrev_b32 v17, 5, v1")
    A(f"v_mov_b32 v22, {F.BIG}")
    A("v_cmp_eq_u32 vcc, 0, v17")
    lv = A.newlabel("isV"); sk = A.newlabel("kvst")
    A(f"s_cmp_lt_u32 s{F.S_KVT}, 2")
    A(f"s_cbranch_scc0 {lv}")
    A(f"buffer_store_dwordx4 v[48:51], v2, s[24:27], s39 offen sc1")
    A("v_lshlrev_b32 v21, 3, v16")
    A("v_cndmask_b32 v21, v22, v21, vcc")
    A(f"buffer_store_dwordx2 v[52:53], v21, s[24:27], s39 offen offset:1024 sc1")
    A(f"s_branch {sk}")
    A.label(lv)
    A("s_add_u32 s39, s39, 40960")
    A("v_lshrrev_b32 v20, 4, v16")
    A("v_mul_u32_u24 v20, 640, v20")
    A("v_bfe_u32 v21, v16, 2, 1")
    A("v_mul_u32_u24 v21, 320, v21")
    A("v_add_u32 v20, v20, v21")
    A("v_bfe_u32 v21, v16, 3, 1")
    A("v_lshl_add_u32 v20, v21, 3, v20")
    A("v_and_b32 v21, 3, v16")
    A("v_lshl_add_u32 v20, v21, 1, v20")
    A("v_lshl_add_u32 v20, v17, 6, v20")
    A("v_cndmask_b32 v21, v22, v20, vcc")
    for r in range(12):
        off = (r % 4) * 16 + (r // 4) * 128
        va = 20 if r < 8 else 21
        op = "buffer_store_short" if r % 2 == 0 else "buffer_store_short_d16_hi"
        A(f"{op} v{48 + r//2}, v{va}, s[24:27], s39 offen offset:{off} sc1")
    A.label(sk)

def nonce_read(A, n):
    A(f"s_waitcnt vmcnt({n})")
    A("v_readfirstlane_b32 s40, v170")
    A("s_nop 3")
    A("s_cmp_eq_u32 s40, 0")
    A(f"s_cselect_b32 s{F.S_NONCE}, s78, s40")
    A(f"v_mov_b32 v16, {F.SPARE}")
    A(f"v_mov_b32 v17, s{F.S_NONCE}")
    A("ds_write_b32 v16, v17")
    A("s_waitcnt lgkmcnt(0)")

def t_ids(A, u, skip):
    A(f"s_add_u32 s39, s{F.S_RB}, {32*(u//2)}")
    A("s_cmp_ge_u32 s39, 68")
    A(f"s_cbranch_scc1 {skip}")
    if u % 2 == 0:
        A(f"s_mov_b32 s43, s{F.S_CG}")
    else:
        A(f"s_sub_u32 s43, s{F.S_CG}, 4")
def t_dma(A, u, slot):
    sk = A.newlabel("noT")
    t_ids(A, u, sk)
    A("s_cmp_lt_u32 s39, 20")
    A("s_cselect_b32 s28, s52, s60")
    A("s_cselect_b32 s29, s53, s61")
    A("s_mov_b32 s40, 819200")
    A("s_cselect_b32 s30, s40, 1966080")
    A("s_mov_b32 s31, 0x00020000")
    A("s_cselect_b32 s40, 0, 20")
    A("s_sub_u32 s40, s39, s40")
    A("s_mul_i32 s40, s40, 40960")
    A(f"s_mul_i32 s41, s43, 160")
    A("s_add_u32 s40, s40, s41")
    for p in range(5):
        A(f"s_mov_b32 m0, {F.KVW + 5120*slot + 1024*p}")
        A("s_nop 0")
        A(f"buffer_load_dwordx4 v{24+p}, s[28:31], s40 offen lds")
    A.label(sk)
def t_proc(A, u, slot):
    sk = A.newlabel("noT2")
    t_ids(A, u, sk)
    A("s_cmp_lt_u32 s39, 20")
    A("s_cselect_b64 vcc, -1, 0")
    A("s_movk_i32 s40, 640")
    A("s_cselect_b32 s40, s40, 1280")
    A("v_cndmask_b32 v21, v20, v19, vcc")
    A("v_add_u32 v22, s40, v21")
    for nt in range(5):
        A(f"ds_read_b64_tr_b16 {vr(32 + 4*nt, 2)}, v21 offset:{5120*slot + 32*nt}")
        A(f"ds_read_b64_tr_b16 {vr(34 + 4*nt, 2)}, v22 offset:{5120*slot + 32*nt}")
    A(f"s_mul_i32 s40, s43, 68")
    A("s_add_u32 s39, s39, s40")
    A("s_mul_i32 s39, s39, 5120")
    A(f"s_add_u32 s39, s39, {F.WS_W2T}")
    A("s_add_u32 s40, s39, 4096")
    A("s_waitcnt lgkmcnt(0)")
    for nt in range(4):
        A(f"buffer_store_dwordx4 {vr(32 + 4*nt, 4)}, v2, s[24:27], s39 offen offset:{1024*nt} sc1")
    A(f"buffer_store_dwordx4 {vr(48, 4)}, v2, s[24:27], s40 offen sc1")
    A.label(sk)

def kv_poll(A, name, half):
    def setup(j):
        A(f"v_lshlrev_b32 v252, 2, v1")
        A(f"v_add_u32 v252, {F.FLG_KV + 256*half}, v252")
    F.poll_flags(A, setup, 1, name)

def service(A, name):
    W = F.S_W
    F.ln_setup(A)
    if_duty(A, kv_addr)
    F.after_kernarg(A)
    if F.CODEPF:
        A("s_getpc_b64 s[70:71]")
        A.label(f"L_{name}_pcref")
        A(f"s_sub_u32 s70, s70, L_{name}_pcref-{name}")
        A("s_subb_u32 s71, s71, 0")
        A("s_lshr_b32 s39, s2, 3")
        A(f"s_mul_i32 s39, s39, {F.CODEPF * 128}")
        A("v_lshlrev_b32 v222, 7, v1")
        A("v_add_u32 v222, s39, v222")
        A("v_mov_b32 v223, s71")
        A("v_add_co_u32 v222, vcc, s70, v222")
        A("s_nop 1")
        A("v_addc_co_u32 v223, vcc, 0, v223, vcc")
        A(f"v_cmp_gt_u32 vcc, {F.CODEPF}, v1")
        A("s_mov_b64 s[72:73], vcc")
        A(f"s_lshr_b32 s39, s2, 3")
        A(f"s_mul_i32 s39, s39, {F.CODEPF}")
        A("v_add_u32 v225, s39, v1")
        A(f"v_cmp_gt_u32 vcc, (L_{name}_end-{name})/128, v225")
        A("s_nop 3")
        A("s_and_b64 vcc, vcc, s[72:73]")
        A("s_and_saveexec_b64 s[70:71], vcc")
        A(f"s_cbranch_execz L_{name}_nopf")
        A("global_load_dword v224, v[222:223], off")
        A.label(f"L_{name}_nopf")
        A("s_mov_b64 exec, s[70:71]")
    F.x_loads(A)
    F.kvw_loads(A)
    if F.TLBPF:
        step = F.TLBPF
        n = (F.WS_SIZE + step - 1) // step
        for i in range((n + 63) // 64):
            A(f"v_add_u32 v226, {64*i}, v1")
            A(f"v_mul_lo_u32 v226, v226, s3") if False else None
            A(f"s_mov_b32 s39, {step}")
            A(f"v_mul_lo_u32 v226, v226, s39")
            A(f"buffer_load_dword v{227+i}, v226, s[24:27], 0 offen")
        for (lo, nbytes) in ((64, 2621440), (60, 1966080), (52, 819200), (62, 1280)):
            srd(A, 72, lo, lo + 1, nbytes)
            A(f"s_mov_b32 s39, {step}")
            A(f"v_mul_lo_u32 v226, v1, s39")
            A(f"buffer_load_dword v231, v226, s[72:75], 0 offen")
    srd(A, 72, 66, 67, 256)
    A("s_memrealtime s[70:71]")
    A("s_waitcnt lgkmcnt(0)")
    A("s_or_b32 s78, s70, 1")
    A("v_mov_b32 v170, s78")
    A("v_mov_b32 v171, 0")
    A("v_mov_b32 v172, 0")
    A("s_mov_b64 exec, 1")
    A("buffer_atomic_cmpswap v[170:171], v172, s[72:75], 0 offen sc0 sc1")
    A("s_mov_b64 exec, -1")
    ntlb = 0
    if F.TLBPF:
        ntlb = ((F.WS_SIZE + F.TLBPF - 1) // F.TLBPF + 63) // 64 + 4
    F.wait_x(A, 1 + ntlb)
    F.layernorm(A)
    ntouch = 0
    if F.TOUCH:
        A("s_bfe_u32 s41, s2, 0x10002")
        A("s_lshr_b32 s42, s2, 3")
        for (per, rs, colb, sr, n) in ((5, 1280, 640, 12, 2), (12, 3072, 1536, 16, 4)):
            tot = 20 * per
            A(f"s_mul_i32 s43, s42, {20*rs}")
            A(f"s_mul_i32 s44, s41, {colb}")
            A("s_add_u32 s43, s43, s44")
            for i in range(n):
                A(f"v_add_u32 v7, {64*i}, v1")
                F.divmod_lane(A, 7, per, 64*n + 64, 8, 9)
                A(f"v_mul_u32_u24 v8, {rs}, v8")
                A(f"v_lshl_add_u32 v8, v9, 7, v8")
                A(f"v_cmp_gt_u32 vcc, {tot}, v7")
                A(f"v_mov_b32 v9, {F.BIG}")
                A("s_nop 0")
                A("v_cndmask_b32 v8, v9, v8, vcc")
                A(f"buffer_load_dword v{173 + ntouch}, v8, s[{sr}:{sr+3}], s43 offen")
                ntouch += 1
    nond = A.newlabel("svc_nonduty")
    A("s_cmp_eq_u32 s77, 0")
    A(f"s_cbranch_scc1 {nond}")
    A(f"s_waitcnt vmcnt({1 + ntouch + ntlb}) lgkmcnt(0)")
    trace(A, 250)
    A("s_setprio 0")
    A("s_barrier")
    trace(A, 250)
    kv_reads(A)
    kv_mfma(A)
    for i in range(20):
        trace(A, 250, 2)
        A("s_barrier")
        if i == 1:
            kv_reduce_store(A)
        if i == 5:
            nonce_read(A, 0)
        if i == 5:
            A("s_waitcnt vmcnt(0)")
            F.publish(A, "KV")
        if i == 16: kv_poll(A, name, 0)
        if i in KV_SCHED: kv_pieces(A, KV_SCHED[i], 0)
    A(f"s_branch L_{name}_svcjoin")
    A.label(nond)
    for p in range(5):
        A(f"v_add_u32 v7, {64*p}, v1")
        F.divmod_lane(A, 7, 10, 320, 8, 9)
        A("v_mul_u32_u24 v8, 1280, v8")
        A(f"v_lshl_add_u32 v{24+p}, v9, 4, v8")
    A("v_lshrrev_b32 v16, 4, v1")
    A("v_bfe_u32 v17, v1, 2, 2")
    A("v_and_b32 v18, 3, v1")
    A("v_lshlrev_b32 v19, 3, v16")
    A("v_lshrrev_b32 v20, 1, v16")
    A("v_lshlrev_b32 v20, 4, v20")
    A("v_and_b32 v21, 1, v16")
    A("v_lshl_add_u32 v20, v21, 2, v20")
    for rr in (19, 20):
        A(f"v_add_u32 v{rr}, v{rr}, v17")
        A(f"v_mul_u32_u24 v{rr}, 160, v{rr}")
        A(f"v_lshl_add_u32 v{rr}, v18, 3, v{rr}")
        A(f"v_add_u32 v{rr}, {F.KVW}, v{rr}")
    A("s_waitcnt lgkmcnt(0)")
    trace(A, 250)
    A("s_setprio 0")
    A("s_barrier")
    trace(A, 250)
    for i in range(20):
        trace(A, 250, 2)
        A("s_barrier")
        if i == 3: nonce_read(A, 15)
        if i <= 4: t_dma(A, i, i)
        if 6 <= i <= 10:
            A("s_waitcnt vmcnt(15)")
            t_proc(A, i - 6, i - 6)
        if i == 11: t_dma(A, 5, 0)
        if i == 14:
            A("s_waitcnt vmcnt(0)")
            t_proc(A, 5, 0)
        if i == 16: kv_poll(A, name, 0)
        if i in KV_SCHED: kv_pieces(A, KV_SCHED[i], 0)
    A.label(f"L_{name}_svcjoin")
    after_loop_L(A, name, 0)

NL = 6
def loader(A, name):
    W = F.S_W
    isq = A.newlabel("isq"); dn = A.newlabel("setup_done")
    A(f"s_cmp_eq_u32 s{W}, 7")
    A(f"s_cbranch_scc1 {isq}")
    for i in range(6):
        A(f"s_sub_u32 s39, s{W}, 5")
        A("s_mul_i32 s39, s39, 384")
        A(f"s_add_u32 s39, s39, {64*i}")
        A("v_add_u32 v7, s39, v1")
        F.divmod_lane(A, 7, 24, 768, 8, 9)
        A("v_bfe_u32 v10, v8, 1, 1")
        A("v_lshlrev_b32 v10, 2, v10")
        A("v_xor_b32 v9, v9, v10")
        A("v_mul_u32_u24 v8, 3072, v8")
        A(f"v_lshl_add_u32 v{40+i}, v9, 4, v8")
    A(f"s_branch {dn}")
    A.label(isq)
    for i in range(6):
        A(f"v_add_u32 v7, {64*i}, v1")
        F.divmod_lane(A, 7, 12, 384, 8, 9)
        A("v_mul_u32_u24 v8, 1280, v8")
        A(f"v_lshl_add_u32 v{40+i}, v9, 4, v8")
        A("v_cmp_lt_u32 vcc, 9, v9")
        A(f"v_mov_b32 v10, {F.BIG}")
        A("s_nop 0")
        A(f"v_cndmask_b32 v{40+i}, v{40+i}, v10, vcc")
    A.label(dn)
    F.ln_setup(A)
    if_duty(A, kv_addr)
    F.after_kernarg(A)
    A(f"s_cmp_eq_u32 s{W}, 7")
    for j in range(4):
        A(f"s_cselect_b32 s{28+j}, s{12+j}, s{16+j}")
    A("s_movk_i32 s39, 160")
    A("s_cselect_b32 s46, s39, 384")
    A(f"s_mul_i32 s46, s46, s{F.S_CG}")
    A("s_mov_b32 s39, 40960")
    A("s_cselect_b32 s47, s39, 98304")
    A(f"s_sub_u32 s48, s{W}, 5")
    A("s_mul_i32 s48, s48, 6144")
    A(f"s_add_u32 s48, s48, {F.STG0}")
    def dma(stage):
        for i in range(6):
            A(f"s_add_u32 m0, s48, {stage*F.STG + 1024*i}")
            A("s_nop 0")
            A(f"buffer_load_dwordx4 v{40+i}, s[28:31], s46 offen lds")
        A("s_add_u32 s46, s46, s47")
    dma(0)
    F.x_loads(A)
    F.kvw_loads(A)
    dma(1)
    trace(A, 250, 2)
    F.wait_x(A, NL)
    trace(A, 250, 2)
    F.layernorm(A)
    dma(2)
    A(f"s_waitcnt vmcnt({2*NL}) lgkmcnt(0)")
    trace(A, 250)
    A("s_setprio 0")
    A("s_barrier")
    trace(A, 250)
    def pre0(A):
        kv_reads(A); kv_mfma(A)
        A(f"s_sub_u32 s39, s{W}, 5")
        A("s_lshl_b32 s39, s39, 12")
        A(f"s_add_u32 s39, s39, {F.KVW}")
        A("v_add_u32 v16, s39, v2")
    if_duty(A, pre0)
    for i in range(20):
        A(f"; iter {i}")
        A("__WAIT__%d" % i)
        trace(A, 250, 2)
        A("s_barrier")
        if i + 3 <= 19:
            dma(i % 3)
        if i == 0:
            def it0(A):
                A("s_nop 7")
                for j in range(4):
                    A(f"ds_write_b128 v16, {vr(64 + 4*j, 4)} offset:{1024*j}")
                A("s_waitcnt lgkmcnt(0)")
            if_duty(A, it0)
        if i == 7:
            A(f"v_mov_b32 v16, {F.SPARE}")
            A("ds_read_b32 v17, v16")
            A("s_waitcnt lgkmcnt(0)")
            A(f"v_readfirstlane_b32 s{F.S_NONCE}, v17")
        if i in KV_SCHED:
            done = A.newlabel("kvd")
            for l in (1, 2, 3):
                nx = A.newlabel("kvn")
                A(f"s_cmp_eq_u32 s{W}, {4+l}")
                A(f"s_cbranch_scc0 {nx}")
                kv_pieces(A, KV_SCHED[i], l)
                A(f"s_branch {done}")
                A.label(nx)
            A.label(done)
    after_loop_L(A, name, None)

def npieces(i, l):
    return len([1 for idx, q in enumerate(KV_SCHED[i]) if idx % 4 == l])

def fix_waits(text):
    out = []
    for ln in text.split("\n"):
        s = ln.strip()
        if s.startswith("__WAIT__"):
            i = int(s[8:])
            if i + 1 > 19:
                continue
            n = 0
            if i + 2 <= 19: n += NL
            for it in (i - 2, i - 1):
                if it in KV_SCHED:
                    n += min(npieces(it, l) for l in (1, 2, 3))
            out.append(f"    s_waitcnt vmcnt({min(n, 63)})")
        else:
            out.append(ln)
    return "\n".join(out)

def after_loop_L(A, name, l):
    W = F.S_W
    A("s_waitcnt vmcnt(0)")
    trace(A, 250)
    A("s_barrier")
    kv_poll(A, name, 1)
    if l == 0:
        kv_pieces(A, KV_A, 0)
    else:
        done = A.newlabel("kvd")
        for ll in (1, 2, 3):
            nx = A.newlabel("kvn")
            A(f"s_cmp_eq_u32 s{W}, {4+ll}")
            A(f"s_cbranch_scc0 {nx}")
            kv_pieces(A, KV_A, ll)
            A(f"s_branch {done}")
            A.label(nx)
        A.label(done)
    trace(A, 250)
    A("s_barrier")
    if l == 0:
        F.publish(A, "H")
        F.publish(A, "T")
    A("s_waitcnt vmcnt(0)")
    A("s_barrier")
    trace(A, 250)
    A(f"s_setprio {F.FFN_PRIO}")
    def setup(j):
        A(f"s_or_b32 s40, s{F.S_CG}, 4")
        A("s_lshl_b32 s40, s40, 8")
        A(f"s_add_u32 s40, s40, {F.FLG_T}")
        A(f"s_lshl_b32 s39, s{F.S_RB}, 8")
        A(f"s_add_u32 s39, s39, {F.FLG_H}")
        A("v_lshlrev_b32 v252, 2, v1")
        A("v_add_u32 v252, s40, v252")
        A("v_and_b32 v255, 7, v1")
        A("v_lshlrev_b32 v255, 2, v255")
        A("v_add_u32 v255, s39, v255")
        A("v_cmp_gt_u32 vcc, 32, v1")
        A("s_nop 1")
        A("v_cndmask_b32 v252, v255, v252, vcc")
    F.poll_flags(A, setup, 1, name)
    trace(A, 250)
    A(f"s_sub_u32 s42, s{W}, 4")
    A(f"s_mul_i32 s54, s{F.S_CG}, 68")
    A("s_add_u32 s54, s54, s42")
    A("s_add_u32 s54, s54, 20")
    A("s_mul_i32 s54, s54, 5120")
    A(f"s_add_u32 s54, s54, {F.WS_W2T}")
    for j in range(4):
        A(f"s_lshl_b32 s39, s{F.S_RB}, 2")
        A(f"s_add_u32 s39, s39, {j}")
        A("s_mul_i32 s39, s39, 48")
        A("s_add_u32 s39, s39, s42")
        A("s_lshl_b32 s39, s39, 10")
        A(f"s_add_u32 s{44+j}, s39, {F.WS_H}")
    def loads(i):
        b = FBUF[i % 4]
        A("s_add_u32 s55, s54, 4096")
        for nt in range(4):
            A(f"buffer_load_dwordx4 {vr(b + 4*nt, 4)}, v2, s[24:27], s54 offen offset:{1024*nt} sc1")
        A(f"buffer_load_dwordx4 {vr(b + 16, 4)}, v2, s[24:27], s55 offen sc1")
        for j in range(4):
            A(f"buffer_load_dwordx4 {vr(b + 20 + 4*j, 4)}, v2, s[24:27], s{44+j} offen sc1")
        A(f"s_add_u32 s54, s54, {4*5120}")
        for j in range(4):
            A(f"s_add_u32 s{44+j}, s{44+j}, 4096")
    N = 12
    NT = F.N_TAIL
    for i in range(3):
        loads(i)
    for r in range(80):
        A(f"v_mov_b32 v{FACC + r}, 0")
    for i in range(N):
        if i == N - NT:
            if i + 3 < N:
                loads(i + 3)
            F.xb_loads(A)
            A("s_barrier")
            if l == 0:
                F.publish(A, "O")
        elif i + 3 < N:
            loads(i + 3)
        later = min(N - 1, i + 3) - i
        extra = 1 if (l == 0 and i >= N - NT and i <= N - NT + 3) else 0
        xb = 10 if (NT > 0 and i >= N - NT and i + 3 >= N) else 0
        A(f"s_waitcnt vmcnt({9*later + xb})")
        trace(A, 250, 2 if i not in (0, N - NT, N - 1) else 1)
        b = FBUF[i % 4]
        for j in range(4):
            for nt in range(5):
                a = FACC + 20*j + 4*nt
                A(f"v_mfma_f32_16x16x32_bf16 {vr(a,4)}, {vr(b + 4*nt, 4)}, {vr(b + 20 + 4*j, 4)}, {vr(a,4)}")
    if NT == 0:
        F.xb_loads(A)
        A("s_barrier")
        if l == 0:
            F.publish(A, "O")
    A("s_setprio 0")
    trace(A, 250)
    trace_dump(A, 250, 0, 252)
    F.tail_common(A, name, is_L=True, l0=(l == 0))
```
